```python
import torch

def _softmax(x, axis=-1):
    return torch.softmax(x, dim=axis)

def _gelu(x):
    return torch.nn.functional.gelu(x, approximate='tanh')

def _silu(x):
    return torch.nn.functional.silu(x)

def _sigmoid(x):
    return torch.sigmoid(x)

def _layernorm(x, axis=-1, eps=1e-05):
    m = x.mean(dim=axis, keepdim=True)
    v = x.var(dim=axis, keepdim=True, unbiased=False)
    return (x - m) / torch.sqrt(v + eps)

def _scatter_add(tgt, idx, src, axis=0):
    return tgt.clone().index_add_(axis, idx, src)

def _segment_sum(src, seg, n):
    out = torch.zeros((n,) + src.shape[1:], dtype=src.dtype)
    return out.index_add_(0, seg, src)

def _pad(x, pw):
    flat = tuple((v for pair in reversed(pw) for v in pair))
    return torch.nn.functional.pad(x, flat)
kernel_name = 'standalone__kv_cache_quant_pre_rope_vs_post_rope__sampling'

def setup_inputs():

    _w = lambda a: (lambda t: t.to(torch.bfloat16) if t.is_floating_point() else t)(torch.as_tensor(a))
    B, Sq, Skv = (16, 8, 4096)
    H, Dh0 = (4, 128)
    G = 128 if 128 > 0 else Dh0
    G = max(2, G // 2 * 2)
    Dh = max(G, Dh0 // G * G)
    Skv = max(Skv, Sq)
    ng = Dh // G
    bits = 2 if 2 > 1 else 4
    bits = max(2, min(8, bits))
    qmax = (1 << bits) - 1
    half = Dh // 2
    inv = 1.0 / 10000.0 ** (torch.arange(half) / max(1, half))
    ang_k = torch.arange(Skv)[:, None] * inv[None, :]
    ang_q = torch.arange(Skv - Sq, Skv)[:, None] * inv[None, :]
    kc = torch.cat([torch.cos(ang_k), torch.cos(ang_k)], dim=-1)
    ks = torch.cat([torch.sin(ang_k), torch.sin(ang_k)], dim=-1)
    qc = torch.cat([torch.cos(ang_q), torch.cos(ang_q)], dim=-1)
    qs = torch.cat([torch.sin(ang_q), torch.sin(ang_q)], dim=-1)
    qk_i = torch.randint(0, qmax + 1, (B, H, Skv, Dh)).to(torch.int32)
    qv_i = torch.randint(0, qmax + 1, (B, H, Skv, Dh)).to(torch.int32)
    ksc = torch.abs((lambda *s: torch.randn(*s, dtype=torch.bfloat16) * 0.4)(B, H, Skv, ng)) * 0.1 + 0.01
    kzp = torch.full((B, H, Skv, ng), qmax / 2.0)
    vsc = torch.abs((lambda *s: torch.randn(*s, dtype=torch.bfloat16) * 0.4)(B, H, Skv, ng)) * 0.1 + 0.01
    vzp = torch.full((B, H, Skv, ng), qmax / 2.0)
    return {'q': _w((lambda *s: torch.randn(*s, dtype=torch.bfloat16) * 6.4)(B, H, Sq, Dh) * 0.5), 'qk': _w(qk_i), 'k_scales': _w(ksc), 'k_zeros': _w(kzp), 'qv': _w(qv_i), 'v_scales': _w(vsc), 'v_zeros': _w(vzp), 'q_cos': _w(qc), 'q_sin': _w(qs), 'k_cos': _w(kc), 'k_sin': _w(ks)}

def reference(q, qk, k_scales, k_zeros, qv, v_scales, v_zeros, q_cos, q_sin, k_cos, k_sin):
    B, H, Sq, Dh = q.shape
    ng = k_scales.shape[-1]
    G = Dh // ng
    half = Dh // 2
    ks = (lambda x, n, axis: torch.repeat_interleave(x, n, dim=axis))(k_scales, G, axis=-1)
    kz = (lambda x, n, axis: torch.repeat_interleave(x, n, dim=axis))(k_zeros, G, axis=-1)
    k = ((lambda x, dt: x.to(dt))(qk, q.dtype) - kz) * ks
    vs = (lambda x, n, axis: torch.repeat_interleave(x, n, dim=axis))(v_scales, G, axis=-1)
    vz = (lambda x, n, axis: torch.repeat_interleave(x, n, dim=axis))(v_zeros, G, axis=-1)
    v = ((lambda x, dt: x.to(dt))(qv, q.dtype) - vz) * vs
    k1 = k[..., :half].clone()
    k2 = k[..., half:].clone()
    krh = torch.concatenate([-k2, k1], axis=-1)
    kr = k * k_cos[None, None, :, :] + krh * k_sin[None, None, :, :]
    q1 = q[..., :half].clone()
    q2 = q[..., half:].clone()
    qrh = torch.concatenate([-q2, q1], axis=-1)
    qr = q * q_cos[None, None, :, :] + qrh * q_sin[None, None, :, :]
    logits = torch.einsum('bhqd,bhkd->bhqk', qr, kr) * float(Dh) ** (-0.5)
    attn = _softmax(logits, axis=-1)
    out = torch.einsum('bhqk,bhkd->bhqd', attn, v)
    return out
```

```python
import sys, math, struct
KNAME = "standalone__kv_cache_quant_pre_rope_vs_post_rope__sampling_kernel"
HEADER = open("standalone__kv_cache_quant_pre_rope_vs_post_rope__sampling.s.ref").read().split("; Override launch")[0]

def f2u(x):
    return struct.unpack("<I", struct.pack("<f", x))[0]

def gen(D=24, nt="nt", csflags="", TB=13, stamps=False):
    L = []
    def A(s=""):
        L.append(s if (s.endswith(":") or s.startswith(".") or s.startswith(";")) else "    " + s)
    LDS_S = 65536
    LDS_T = LDS_S + 2048
    lds = LDS_T + 16
    L.append(HEADER.rstrip())
    A(f"; @launch grid=(256,1,1) block=(320,1,1) lds={lds}")
    A('.amdgcn_target "amdgcn-amd-amdhsa--gfx950"')
    A(".text")
    A(f".globl {KNAME}")
    A(".p2align 8")
    A(f".type {KNAME},@function")
    A(f"{KNAME}:")
    A("s_cmp_ge_u32 s2, 256")
    A("s_cbranch_scc1 L_end")
    if stamps:
        A("s_memrealtime s[84:85]")
    A("s_load_dwordx16 s[16:31], s[0:1], 0")
    A("s_load_dwordx8 s[32:39], s[0:1], 64")
    A("s_load_dwordx4 s[40:43], s[0:1], 96")
    A("v_lshrrev_b32 v2, 6, v0")
    A("v_and_b32 v1, 63, v0")
    A("v_readfirstlane_b32 s3, v2")
    A("s_bfe_u32 s4, s2, 0x20001")
    A("s_lshr_b32 s5, s2, 3")
    A("s_lshl_b32 s5, s5, 1")
    A("s_and_b32 s6, s2, 1")
    A("s_or_b32 s5, s5, s6")
    A("s_lshl_b32 s6, s5, 2")
    A("s_or_b32 s6, s6, s4                        ; head*4+quarter")
    A("s_cmp_lg_u32 s3, 0")
    A("s_cbranch_scc1 L_consumer")
    A("s_setprio 3")
    A("v_lshrrev_b32 v2, 3, v1")
    A("v_and_b32 v3, 7, v1")
    A("v_lshlrev_b32 v4, 12, v2")
    A("v_lshl_add_u32 v5, v3, 4, v4")
    A("v_lshrrev_b32 v2, 5, v1")
    A("v_lshlrev_b32 v2, 4, v2")
    A("v_xor_b32 v4, v5, v2")
    A("s_lshl_b32 s7, s6, 19")
    A("s_mov_b32 s10, 0x80000")
    A("s_mov_b32 s11, 0x00020000")
    A("s_mov_b32 s14, 0x80000")
    A("s_mov_b32 s15, 0x00020000")
    A("s_mov_b32 s44, 0")
    A("s_mov_b32 m0, 0")
    A("s_waitcnt lgkmcnt(0)")
    A("s_add_u32 s8, s18, s7")
    A("s_addc_u32 s9, s19, 0")
    A("s_add_u32 s12, s24, s7")
    A("s_addc_u32 s13, s25, 0")
    for j in range(D):
        if j:
            A("s_addk_i32 m0, 0x380")
            A("s_nop 0")
        A(f"buffer_load_dwordx4 v4, s[8:11], s44 offen offset:{128*j} {nt} lds")
    A("s_lshl_b32 s46, s5, 2")
    A(f"v_mov_b32 v6, {LDS_T}")
    A("L_load:")
    A("s_add_u32 s45, s44, 0x8000")
    for p in range(64):
        n = p + D
        if n == 32:
            A("s_mov_b32 m0, 0x8000")
        elif n == 64:
            A("s_mov_b32 m0, 0")
        else:
            A("s_addk_i32 m0, 0x380")
        A(f"s_waitcnt vmcnt({D-1})")
        if p % 16 == 15:
            A("s_barrier")
        if n < 32:
            A(f"buffer_load_dwordx4 v4, s[8:11], s44 offen offset:{128*n} {nt} lds")
        elif n < 64:
            A(f"buffer_load_dwordx4 v5, s[12:15], s44 offen offset:{128*(n-32)} {nt} lds")
        else:
            A(f"buffer_load_dwordx4 v4, s[8:11], s45 offen offset:{128*(n-64)} {nt} lds")
    A(f"s_cmp_lg_u32 s44, {TB*0x8000}")
    A("s_cbranch_scc1 L_noticket")
    A("s_mov_b32 s47, 1")
    A("s_atomic_add s47, s[40:41], s46 glc")
    A("L_noticket:")
    A(f"s_cmp_lg_u32 s44, {14*0x8000}")
    A("s_cbranch_scc1 L_nopub")
    A("s_waitcnt lgkmcnt(0)")
    A("v_mov_b32 v7, s47")
    A("ds_write_b32 v6, v7")
    A("s_waitcnt lgkmcnt(0)")
    A("L_nopub:")
    A("s_mov_b32 s44, s45")
    A("s_cmp_lt_u32 s44, 0x80000")
    A("s_cbranch_scc1 L_load")
    A("s_endpgm")
    vAK0, vAK1, vAV, vASw, vASr, vOCS, vOKZ, vOKS, vOVS, vOWS, vOML, vOOUT = range(6, 18)
    vM, vL, vAL, vT = 18, 19, 20, 21
    vKZ = [22, 24]; vKS = [23, 25]
    vU, vS = 26, 27
    vD = 28; vQ = 32; vA = 40; vX = 48
    vCS = [64, 80]; vC = 96
    vP = 128; vPP = 136; vVS = 140; vVZ = 144; vVU = 148; vACC = 156; vCOR = 172
    SC, SS, SKS, SKZ, SVS, SVZ, SWS, SOUT, ST = 44, 48, 52, 56, 60, 64, 68, 72, 76
    def r(a, n):
        return f"v[{a}:{a+n-1}]"
    def srd(s):
        return f"s[{s}:{s+3}]"
    def mksrd(s, ptr, size):
        A(f"s_mov_b32 s{s}, s{ptr}")
        A(f"s_mov_b32 s{s+1}, s{ptr+1}")
        A(f"s_mov_b32 s{s+2}, {size}")
        A(f"s_mov_b32 s{s+3}, 0x00020000")
    def unpack(dst, src, n):
        for i in range(n):
            A(f"v_lshlrev_b32 v{dst+2*i}, 16, v{src+i}")
            A(f"v_and_b32 v{dst+2*i+1}, s80, v{src+i}")
    def rope(i0, i1, dst):
        Clo, Chi, Slo, Shi = vC, vC + 8, vC + 16, vC + 24
        for i in range(i0, i1, 2):
            A(f"v_pk_mul_f32 {r(Clo+i,2)}, {r(vX+i,2)}, {r(Clo+i,2)}")
            A(f"v_pk_mul_f32 {r(Chi+i,2)}, {r(vX+8+i,2)}, {r(Chi+i,2)}")
        for i in range(i0, i1, 2):
            A(f"v_pk_fma_f32 {r(Clo+i,2)}, {r(vX+8+i,2)}, {r(Slo+i,2)}, {r(Clo+i,2)} neg_lo:[1,0,0] neg_hi:[1,0,0]")
            A(f"v_pk_fma_f32 {r(Chi+i,2)}, {r(vX+i,2)}, {r(Shi+i,2)}, {r(Chi+i,2)}")
        for i in range(i0, i1, 2):
            A(f"v_cvt_pk_bf16_f32 v{dst+i//2}, v{Clo+i}, v{Clo+i+1}")
            A(f"v_cvt_pk_bf16_f32 v{dst+4+i//2}, v{Chi+i}, v{Chi+i+1}")
    def load_cs(h, soff):
        b = vCS[h]
        A(f"buffer_load_dwordx4 {r(b,4)}, v{vOCS}, {srd(SC)}, {soff} offen offset:{h*1024} {csflags}")
        A(f"buffer_load_dwordx4 {r(b+4,4)}, v{vOCS}, {srd(SC)}, {soff} offen offset:{h*1024+128} {csflags}")
        A(f"buffer_load_dwordx4 {r(b+8,4)}, v{vOCS}, {srd(SS)}, {soff} offen offset:{h*1024} {csflags}")
        A(f"buffer_load_dwordx4 {r(b+12,4)}, v{vOCS}, {srd(SS)}, {soff} offen offset:{h*1024+128} {csflags}")
    def load_kz(h, soff):
        A(f"buffer_load_short_d16_hi v{vKZ[h]}, v{vOKZ}, {srd(SKZ)}, {soff} offen offset:{h*8}")
        A(f"buffer_load_short_d16_hi v{vKS[h]}, v{vOKS}, {srd(SKS)}, {soff} offen offset:{h*8}")
    def load_vs(soff):
        A(f"buffer_load_dwordx4 {r(vVS,4)}, v{vOVS}, {srd(SVS)}, {soff} offen")
    def load_vz(soff):
        A(f"buffer_load_dwordx4 {r(vVZ,4)}, v{vOVS}, {srd(SVZ)}, {soff} offen")

    A("L_consumer:")
    A("s_sub_u32 s3, s3, 1                        ; w")
    A("s_mov_b32 s80, 0xffff0000")
    A(f"s_mov_b32 s81, {hex(f2u(128 ** -0.5 * math.log2(math.e)))}")
    A("v_lshrrev_b32 v2, 4, v1                    ; g")
    A("v_bfe_u32 v3, v1, 1, 3")
    A("v_and_b32 v4, 1, v1                        ; a")
    A("v_lshl_add_u32 v5, v2, 1, v4               ; e = 2g+a")
    A(f"v_lshl_add_u32 v{vOKZ}, v3, 3, s3          ; 8*rho + w")
    A(f"v_lshlrev_b32 v{vOCS}, 8, v{vOKZ}")
    A(f"v_lshl_add_u32 v{vOCS}, v5, 4, v{vOCS}")
    A(f"v_lshlrev_b32 v{vOKZ}, 1, v{vOKZ}")
    A("s_lshl_b32 s7, s3, 12")
    A(f"v_lshrrev_b32 v{vAK0}, 5, v1")
    A(f"v_lshlrev_b32 v{vAK0}, 10, v{vAK0}          ; (g>>1)*1024")
    A(f"v_lshl_add_u32 v{vAK0}, v3, 7, v{vAK0}      ; + rho*128")
    A("v_and_b32 v5, 3, v5")
    A(f"v_lshl_add_u32 v{vAK0}, v5, 5, v{vAK0}      ; + (e&3)*32")
    A("v_lshrrev_b32 v5, 2, v3")
    A(f"v_lshl_add_u32 v{vAK0}, v5, 4, v{vAK0}      ; + (rho>>2)*16")
    A(f"v_add_u32 v{vAK0}, s7, v{vAK0}")
    A(f"v_xor_b32 v{vAK1}, 16, v{vAK0}")
    A(f"v_lshlrev_b32 v{vOWS}, 4, v1")
    A("s_lshl_b32 s7, s3, 10")
    A("s_add_u32 s7, s7, 0x8000")
    A(f"v_add_u32 v{vAV}, s7, v{vOWS}")
    A(f"v_add_u32 v{vASr}, {LDS_S}, v{vOWS}")
    A("s_lshl_b32 s7, s3, 2")
    A(f"v_add_u32 v{vASw}, s7, v{vASr}")
    A("v_lshrrev_b32 v3, 3, v1")
    A("v_and_b32 v4, 7, v1                        ; q")
    A(f"v_lshlrev_b32 v{vOVS}, 4, v3")
    A("s_lshl_b32 s7, s3, 1")
    A(f"v_add_u32 v{vOKS}, s7, v{vOVS}")
    A(f"v_lshlrev_b32 v{vOML}, 3, v4")
    A(f"v_lshl_add_u32 v5, v4, 8, v{vOVS}          ; q*256 + e'*16")
    A("v_bfe_u32 v2, v1, 3, 2")
    A("v_lshlrev_b32 v2, 1, v2")
    A("v_lshrrev_b32 v3, 5, v1")
    A("v_add_u32 v2, v2, v3                       ; c")
    A("v_lshlrev_b32 v2, 3, v2")
    A(f"v_lshl_add_u32 v{vOOUT}, v4, 8, v2")
    A("s_lshl_b32 s7, s3, 6")
    A(f"v_add_u32 v{vOOUT}, s7, v{vOOUT}")
    for k in vKZ + vKS:
        A(f"v_mov_b32 v{k}, 0")
    for i in range(4):
        A(f"v_mov_b32 v{vD+i}, -1")
    A("s_lshl_b32 s12, s4, 18")
    A("s_lshl_b32 s13, s6, 11")
    A("s_lshl_b32 s14, s5, 11")
    A("s_lshl_b32 s15, s6, 2")
    A("s_or_b32 s15, s15, s3")
    A("s_lshl_b32 s15, s15, 11")
    A("s_waitcnt lgkmcnt(0)")
    mksrd(SWS, 42, 0x200000)
    mksrd(ST, 16, 131072)
    A(f"buffer_load_dwordx4 {r(vP,4)}, v5, {srd(ST)}, s14 offen")
    A(f"buffer_load_dwordx4 {r(vP+4,4)}, v5, {srd(ST)}, s14 offen offset:128")
    mksrd(SC, 30, 2048)
    mksrd(SS, 32, 2048)
    A(f"buffer_load_dwordx4 {r(vVU,4)}, v5, {srd(SC)}, 0 offen")
    A(f"buffer_load_dwordx4 {r(vVU+4,4)}, v5, {srd(SC)}, 0 offen offset:128")
    A(f"buffer_load_dwordx4 {r(vVU+8,4)}, v5, {srd(SS)}, 0 offen")
    A(f"buffer_load_dwordx4 {r(vVU+12,4)}, v5, {srd(SS)}, 0 offen offset:128")
    mksrd(SC, 34, 0x100000)
    mksrd(SS, 36, 0x100000)
    mksrd(SKS, 20, 0x80000)
    mksrd(SKZ, 22, 0x80000)
    mksrd(SVS, 26, 0x80000)
    mksrd(SVZ, 28, 0x80000)
    mksrd(SOUT, 38, 131072)
    load_cs(0, "s12"); load_kz(0, "s13"); load_cs(1, "s12"); load_kz(1, "s13"); load_vs("s13"); load_vz("s13")
    A("s_waitcnt vmcnt(14)")
    A(f"buffer_store_dwordx4 {r(vD,4)}, v{vOWS}, {srd(SWS)}, s15 offen sc1")
    A("s_mov_b64 exec, 0xff")
    A(f"buffer_store_dwordx2 {r(vD,2)}, v{vOML}, {srd(SWS)}, s15 offen offset:1024 sc1")
    A("s_mov_b64 exec, -1")
    unpack(vX, vP, 8)
    unpack(vC, vVU, 16)
    rope(0, 8, vQ)
    for i in range(20):
        A(f"v_mov_b32 v{vACC+i}, 0")
    A(f"v_mov_b32 v{vM}, 0xff7fffff")
    A(f"v_mov_b32 v{vL}, 0")
    A("s_mov_b32 s7, 0")
    A("L_blk:")
    A("s_add_u32 s12, s12, 0x4000")
    A("s_add_u32 s13, s13, 0x80")
    A("s_cmp_eq_u32 s7, 15")
    A("s_cselect_b32 s12, 0x40000000, s12")
    A("s_cselect_b32 s13, 0x40000000, s13")
    for h in range(2):
        A("s_waitcnt vmcnt(10)")
        unpack(vC, vCS[h], 16)
        load_cs(h, "s12")
        A("s_barrier")
        o = h * 16384
        A(f"ds_read_b128 {r(vX,4)}, v{vAK0} offset:{o}")
        A(f"ds_read_b128 {r(vX+8,4)}, v{vAK0} offset:{o+2048}")
        A(f"ds_read_b128 {r(vX+4,4)}, v{vAK1} offset:{o}")
        A(f"ds_read_b128 {r(vX+12,4)}, v{vAK1} offset:{o+2048}")
        A("s_waitcnt vmcnt(12)")
        A(f"v_mul_f32 v{vU}, s81, v{vKS[h]}")
        for part in range(2):
            A(f"s_waitcnt lgkmcnt({2 - 2*part})")
            for b in (vX + 4 * part, vX + 8 + 4 * part):
                for i in range(4):
                    A(f"v_cvt_f32_i32 v{b+i}, v{b+i}")
            for b in (vX + 4 * part, vX + 8 + 4 * part):
                for i in (0, 2):
                    A(f"v_pk_add_f32 {r(b+i,2)}, {r(b+i,2)}, {r(vKZ[h],2)} op_sel_hi:[1,0] neg_lo:[0,1] neg_hi:[0,1]")
            rope(4 * part, 4 * part + 4, vA)
        load_kz(h, "s13")
        A(f"v_mfma_f32_16x16x32_bf16 {r(vD,4)}, {r(vA,4)}, {r(vQ,4)}, 0")
        A(f"v_mfma_f32_16x16x32_bf16 {r(vD,4)}, {r(vA+4,4)}, {r(vQ+4,4)}, {r(vD,4)}")
        A("s_nop 7")
        A(f"v_add_f32_dpp v{vS}, v{vD+1}, v{vD} row_ror:8 row_mask:0xf bank_mask:0x3")
        A(f"v_add_f32_dpp v{vS}, v{vD+2}, v{vD+3} row_ror:8 row_mask:0xf bank_mask:0xc")
        A(f"v_mul_f32 v{vS}, v{vS}, v{vU}")
        A(f"ds_write_b32 v{vASw}, v{vS} offset:{h*1024}")
    A("s_waitcnt vmcnt(12)")
    unpack(vVU, vVS, 4)
    load_vs("s13")
    A("s_waitcnt lgkmcnt(0)")
    def vread(h):
        for t in range(4):
            A(f"ds_read_b128 {r(vX+4*t,4)}, v{vAV} offset:{(4*h+t)*4096}")
    def vcvt(ts):
        for t in ts:
            for j in range(4):
                A(f"v_cvt_f32_i32 v{vX+4*t+j}, v{vX+4*t+j}")
    def vpack(pr):
        for j in range(4):
            A(f"v_cvt_pk_bf16_f32 v{vA+2*j+pr}, v{vX+8*pr+j}, v{vX+8*pr+4+j}")
    def vmfma(h):
        A(f"v_mfma_f32_16x16x16_bf16 {r(vCOR,4)}, {r(vVZ+2*h,2)}, {r(vPP+2*h,2)}, {r(vCOR,4)}")
        for j in range(4):
            A(f"v_mfma_f32_16x16x16_bf16 {r(vACC+4*j,4)}, {r(vA+2*j,2)}, {r(vPP+2*h,2)}, {r(vACC+4*j,4)}")
    A("s_barrier")
    A(f"ds_read_b128 {r(vP,4)}, v{vASr}")
    A(f"ds_read_b128 {r(vP+4,4)}, v{vASr} offset:1024")
    vread(0)
    A("s_waitcnt lgkmcnt(4)")
    A(f"v_max3_f32 v{vT}, v{vP}, v{vP+1}, v{vP+2}")
    A(f"v_max3_f32 v{vU}, v{vP+3}, v{vP+4}, v{vP+5}")
    A(f"v_max3_f32 v{vT}, v{vT}, v{vP+6}, v{vP+7}")
    A(f"v_max3_f32 v{vT}, v{vT}, v{vU}, v{vM}")
    A("s_waitcnt lgkmcnt(2)")
    vcvt([0])
    A(f"v_max_f32_dpp v{vT}, v{vT}, v{vT} row_ror:8 row_mask:0xf bank_mask:0xf")
    A(f"v_mov_b32 v{vU}, v{vT}")
    vcvt([1])
    A(f"v_permlane16_swap_b32 v{vT}, v{vU}")
    A(f"v_max_f32 v{vT}, v{vT}, v{vU}")
    A(f"v_mov_b32 v{vU}, v{vT}")
    vpack(0)
    A(f"v_permlane32_swap_b32 v{vT}, v{vU}")
    A(f"v_max_f32 v{vT}, v{vT}, v{vU}")
    A(f"v_sub_f32 v{vAL}, v{vM}, v{vT}")
    A(f"v_mov_b32 v{vM}, v{vT}")
    A(f"v_exp_f32 v{vAL}, v{vAL}")
    for i in range(0, 8, 2):
        A(f"v_pk_add_f32 {r(vP+i,2)}, {r(vP+i,2)}, {r(vM,2)} op_sel_hi:[1,0] neg_lo:[0,1] neg_hi:[0,1]")
    for i in range(8):
        A(f"v_exp_f32 v{vP+i}, v{vP+i}")
    for i in range(0, 16, 2):
        A(f"v_pk_mul_f32 {r(vACC+i,2)}, {r(vACC+i,2)}, {r(vAL,2)} op_sel_hi:[1,0]")
    A(f"v_mul_f32 v{vCOR}, v{vCOR}, v{vAL}")
    for i in range(0, 8, 2):
        A(f"v_pk_mul_f32 {r(vVU+i,2)}, {r(vVU+i,2)}, {r(vP+i,2)}")
    for i in range(4):
        A(f"v_cvt_pk_bf16_f32 v{vPP+i}, v{vVU+2*i}, v{vVU+2*i+1}")
    A("s_waitcnt lgkmcnt(0)")
    vcvt([2, 3])
    vpack(1)
    A(f"v_pk_add_f32 {r(vP,2)}, {r(vP,2)}, {r(vP+2,2)}")
    A(f"v_pk_add_f32 {r(vP+4,2)}, {r(vP+4,2)}, {r(vP+6,2)}")
    vmfma(0)
    A(f"v_pk_add_f32 {r(vP,2)}, {r(vP,2)}, {r(vP+4,2)}")
    A(f"v_fma_f32 v{vL}, v{vL}, v{vAL}, v{vP}")
    A(f"v_add_f32 v{vL}, v{vL}, v{vP+1}")
    A("s_barrier")
    vread(1)
    A("s_waitcnt lgkmcnt(2)")
    vcvt([0, 1])
    vpack(0)
    A("s_waitcnt lgkmcnt(0)")
    vcvt([2, 3])
    vpack(1)
    A("s_add_u32 s7, s7, 1")
    A("s_cmp_lt_u32 s7, 16")
    vmfma(1)
    load_vz("s13")
    A("s_cbranch_scc1 L_blk")
    A("; ---------------- merge ----------------")
    A(f"v_mov_b32 v2, {LDS_T}")
    A("ds_read_b32 v3, v2")
    A(f"v_add_f32_dpp v{vL}, v{vL}, v{vL} row_ror:8 row_mask:0xf bank_mask:0xf")
    A(f"v_mov_b32 v{vU}, v{vL}")
    A("s_nop 1")
    A(f"v_permlane16_swap_b32 v{vL}, v{vU}")
    A(f"v_add_f32 v{vL}, v{vL}, v{vU}")
    A(f"v_mov_b32 v{vU}, v{vL}")
    A("s_nop 1")
    A(f"v_permlane32_swap_b32 v{vL}, v{vU}")
    A(f"v_add_f32 v{vL}, v{vL}, v{vU}")
    for i in range(0, 16, 2):
        A(f"v_pk_add_f32 {r(vACC+i,2)}, {r(vACC+i,2)}, {r(vCOR,2)} op_sel_hi:[1,0] neg_lo:[0,1] neg_hi:[0,1]")
    A("s_nop 1")
    for j in range(4):
        A(f"v_permlane32_swap_b32 v{vACC+4*j}, v{vACC+4*j+1}")
        A(f"v_permlane32_swap_b32 v{vACC+4*j+2}, v{vACC+4*j+3}")
    A("s_waitcnt lgkmcnt(0)")
    A("v_readfirstlane_b32 s7, v3")
    for j in range(4):
        A(f"v_add_f32_dpp v{vD+j}, v{vACC+4*j+1}, v{vACC+4*j} row_ror:8 row_mask:0xf bank_mask:0x3")
        A(f"v_add_f32_dpp v{vD+j}, v{vACC+4*j+2}, v{vACC+4*j+3} row_ror:8 row_mask:0xf bank_mask:0xc")
    A("s_cmp_eq_u32 s7, 3")
    A("s_cbranch_scc1 L_merge")
    A(f"buffer_store_dwordx4 {r(vD,4)}, v{vOWS}, {srd(SWS)}, s15 offen sc1")
    A("s_mov_b64 exec, 0xff")
    A(f"buffer_store_dwordx2 {r(vM,2)}, v{vOML}, {srd(SWS)}, s15 offen offset:1024 sc1")
    if stamps:
        A("s_branch L_stamp")
    A("s_endpgm")
    A("L_merge:")
    A("s_xor_b32 s8, s15, 0x2000")
    A("s_xor_b32 s9, s15, 0x4000")
    A("s_xor_b32 s10, s15, 0x6000")
    A("s_mov_b32 s11, 0")
    vO = [vC, vC + 4, vC + 8]; vML = [vC + 12, vC + 14, vC + 16]
    A("L_poll:")
    for k in range(3):
        A(f"buffer_load_dwordx4 {r(vO[k],4)}, v{vOWS}, {srd(SWS)}, s{8+k} offen sc1")
        A(f"buffer_load_dwordx2 {r(vML[k],2)}, v{vOML}, {srd(SWS)}, s{8+k} offen offset:1024 sc1")
    A("s_add_u32 s11, s11, 1")
    A("s_waitcnt vmcnt(0)")
    A(f"v_max_u32 v2, v{vC}, v{vC+1}")
    for i in range(2, 18, 2):
        A(f"v_max3_u32 v2, v2, v{vC+i}, v{vC+i+1}")
    A("v_cmp_eq_u32 vcc, -1, v2")
    A("s_cmp_lt_u32 s11, 0x100000")
    A("s_cselect_b64 vcc, vcc, 0")
    A("s_cbranch_vccnz L_poll")
    A(f"v_max3_f32 v{vT}, v{vM}, v{vML[0]}, v{vML[1]}")
    A(f"v_max_f32 v{vT}, v{vT}, v{vML[2]}")
    ms = [vM] + vML
    os_ = [vD] + vO
    for k in range(4):
        A(f"v_sub_f32 v{ms[k]}, v{ms[k]}, v{vT}")
    for k in range(4):
        A(f"v_exp_f32 v{ms[k]}, v{ms[k]}")
    A("s_nop 0")
    for k in range(4):
        A(f"v_mul_f32 v{ms[k]+1}, v{ms[k]+1}, v{ms[k]}")
    for k in range(4):
        for i in (0, 2):
            A(f"v_pk_mul_f32 {r(os_[k]+i,2)}, {r(os_[k]+i,2)}, {r(ms[k],2)} op_sel_hi:[1,0]")
    A(f"v_add_f32 v2, v{ms[0]+1}, v{ms[1]+1}")
    A(f"v_add_f32 v3, v{ms[2]+1}, v{ms[3]+1}")
    A("v_add_f32 v2, v2, v3")
    A("v_rcp_f32 v2, v2")
    for i in (0, 2):
        A(f"v_pk_add_f32 {r(os_[0]+i,2)}, {r(os_[0]+i,2)}, {r(os_[1]+i,2)}")
        A(f"v_pk_add_f32 {r(os_[2]+i,2)}, {r(os_[2]+i,2)}, {r(os_[3]+i,2)}")
    for i in (0, 2):
        A(f"v_pk_add_f32 {r(os_[0]+i,2)}, {r(os_[0]+i,2)}, {r(os_[2]+i,2)}")
    for i in (0, 2):
        A(f"v_pk_mul_f32 {r(os_[0]+i,2)}, {r(os_[0]+i,2)}, v[2:3] op_sel_hi:[1,0]")
    A(f"v_cvt_pk_bf16_f32 v4, v{vD}, v{vD+1}")
    A(f"v_cvt_pk_bf16_f32 v5, v{vD+2}, v{vD+3}")
    A(f"buffer_store_dwordx2 v[4:5], v{vOOUT}, {srd(SOUT)}, s14 offen")
    if stamps:
        A("L_stamp:")
        A("s_waitcnt vmcnt(0)")
        A("s_memrealtime s[86:87]")
        A("s_getreg_b32 s88, hwreg(HW_REG_XCC_ID)")
        A("s_lshl_b32 s7, s7, 8")
        A("s_or_b32 s88, s88, s7")
        A("s_waitcnt lgkmcnt(0)")
        A("s_mov_b64 exec, 1")
        A("v_mov_b32 v8, s84")
        A("v_mov_b32 v9, s85")
        A("v_mov_b32 v10, s86")
        A("v_mov_b32 v11, s87")
        A("v_mov_b32 v12, s88")
        A("v_mov_b32 v13, s11")
        A("s_lshl_b32 s89, s2, 2")
        A("s_or_b32 s89, s89, s3")
        A("s_lshl_b32 s89, s89, 5")
        A("s_add_u32 s89, s89, 0x400000")
        A("v_mov_b32 v2, 0")
        A(f"s_mov_b32 s{SWS+2}, 0x800000")
        A(f"buffer_store_dwordx4 v[8:11], v2, {srd(SWS)}, s89 offen")
        A(f"buffer_store_dwordx2 v[12:13], v2, {srd(SWS)}, s89 offen offset:16")
    A("L_end:")
    A("s_endpgm")
    A('.section .rodata,"a"')
    A(".p2align 6")
    A(f".amdhsa_kernel {KNAME}")
    A("  .amdhsa_next_free_vgpr 176")
    A("  .amdhsa_next_free_sgpr 96")
    A("  .amdhsa_accum_offset 176")
    A("  .amdhsa_group_segment_fixed_size 0")
    A("  .amdhsa_kernarg_size 112")
    A("  .amdhsa_user_sgpr_count 2")
    A("  .amdhsa_user_sgpr_kernarg_segment_ptr 1")
    A("  .amdhsa_system_sgpr_workgroup_id_x 1")
    A("  .amdhsa_float_denorm_mode_32 3")
    A(".end_amdhsa_kernel")
    return "\n".join(L) + "\n"

if __name__ == "__main__":
    kw = eval("dict(" + (sys.argv[2] if len(sys.argv) > 2 else "") + ")")
    open(sys.argv[1], "w").write(gen(**kw))
```

```python
import sys, math, struct
KNAME = "standalone__kv_cache_quant_pre_rope_vs_post_rope__sampling_kernel"
HEADER = open("standalone__kv_cache_quant_pre_rope_vs_post_rope__sampling.s.ref").read().split("; Override launch")[0]

def f2u(x):
    return struct.unpack("<I", struct.pack("<f", x))[0]

def gen(D=24, nt="nt", csflags="", scflags="", qflags="", TB=13, stamps=False, nocs=False):
    L = []
    def A(s=""):
        L.append(s if (s.endswith(":") or s.startswith(".") or s.startswith(";")) else "    " + s)
    LDS_S = 65536
    LDS_T = LDS_S + 2048
    lds = LDS_T + 16
    L.append(HEADER.rstrip())
    A(f"; @launch grid=(256,1,1) block=(320,1,1) lds={lds}")
    A('.amdgcn_target "amdgcn-amd-amdhsa--gfx950"')
    A(".text")
    A(f".globl {KNAME}")
    A(".p2align 8")
    A(f".type {KNAME},@function")
    A(f"{KNAME}:")
    A("s_cmp_ge_u32 s2, 256")
    A("s_cbranch_scc1 L_end")
    if stamps:
        A("s_memrealtime s[84:85]")
    A("s_load_dwordx16 s[16:31], s[0:1], 0")
    A("s_load_dwordx8 s[32:39], s[0:1], 64")
    A("s_load_dwordx4 s[40:43], s[0:1], 96")
    A("v_lshrrev_b32 v2, 6, v0")
    A("v_and_b32 v1, 63, v0")
    A("v_readfirstlane_b32 s3, v2")
    A("s_bfe_u32 s4, s2, 0x20001")
    A("s_lshr_b32 s5, s2, 3")
    A("s_lshl_b32 s5, s5, 1")
    A("s_and_b32 s6, s2, 1")
    A("s_or_b32 s5, s5, s6")
    A("s_lshl_b32 s6, s5, 2")
    A("s_or_b32 s6, s6, s4                        ; head*4+quarter")
    A("s_cmp_lg_u32 s3, 0")
    A("s_cbranch_scc1 L_consumer")
    A("s_setprio 3")
    A("v_lshrrev_b32 v2, 3, v1")
    A("v_and_b32 v3, 7, v1")
    A("v_lshlrev_b32 v4, 12, v2")
    A("v_lshl_add_u32 v5, v3, 4, v4")
    A("v_lshrrev_b32 v2, 5, v1")
    A("v_lshlrev_b32 v2, 4, v2")
    A("v_xor_b32 v4, v5, v2")
    A("s_lshl_b32 s7, s6, 19")
    A("s_mov_b32 s10, 0x80000")
    A("s_mov_b32 s11, 0x00020000")
    A("s_mov_b32 s14, 0x80000")
    A("s_mov_b32 s15, 0x00020000")
    A("s_mov_b32 s44, 0")
    A("s_mov_b32 m0, 0")
    A("s_waitcnt lgkmcnt(0)")
    A("s_add_u32 s8, s18, s7")
    A("s_addc_u32 s9, s19, 0")
    A("s_add_u32 s12, s24, s7")
    A("s_addc_u32 s13, s25, 0")
    for j in range(D):
        if j:
            A("s_addk_i32 m0, 0x380")
            A("s_nop 0")
        A(f"buffer_load_dwordx4 v4, s[8:11], s44 offen offset:{128*j} {nt} lds")
    A("s_lshl_b32 s46, s5, 2")
    A(f"v_mov_b32 v6, {LDS_T}")
    A("L_load:")
    A("s_add_u32 s45, s44, 0x8000")
    for p in range(64):
        n = p + D
        if n == 32:
            A("s_mov_b32 m0, 0x8000")
        elif n == 64:
            A("s_mov_b32 m0, 0")
        else:
            A("s_addk_i32 m0, 0x380")
        A(f"s_waitcnt vmcnt({D-1})")
        if p % 16 == 15:
            A("s_barrier")
        if n < 32:
            A(f"buffer_load_dwordx4 v4, s[8:11], s44 offen offset:{128*n} {nt} lds")
        elif n < 64:
            A(f"buffer_load_dwordx4 v5, s[12:15], s44 offen offset:{128*(n-32)} {nt} lds")
        else:
            A(f"buffer_load_dwordx4 v4, s[8:11], s45 offen offset:{128*(n-64)} {nt} lds")
    A(f"s_cmp_lg_u32 s44, {TB*0x8000}")
    A("s_cbranch_scc1 L_noticket")
    A("s_mov_b32 s47, 1")
    A("s_atomic_add s47, s[40:41], s46 glc")
    A("L_noticket:")
    A(f"s_cmp_lg_u32 s44, {14*0x8000}")
    A("s_cbranch_scc1 L_nopub")
    A("s_waitcnt lgkmcnt(0)")
    A("v_mov_b32 v7, s47")
    A("ds_write_b32 v6, v7")
    A("s_waitcnt lgkmcnt(0)")
    A("L_nopub:")
    A("s_mov_b32 s44, s45")
    A("s_cmp_lt_u32 s44, 0x80000")
    A("s_cbranch_scc1 L_load")
    A("s_endpgm")
    vAK0, vAK1, vAV, vASw, vASr, vOCS, vOKZ, vOKS, vOVS, vOWS, vOML, vOOUT = range(6, 18)
    vM, vL, vAL, vT = 18, 19, 20, 21
    vKZ = [22, 24]; vKS = [23, 25]
    vU, vS = 26, 27
    vD = 28; vQ = 32; vA = 40; vX = 48
    vCS = [64, 80]; vC = 96
    vP = 128; vPP = 136; vVS = 140; vVZ = 144; vVU = 148; vACC = 156; vCOR = 172
    SC, SS, SKS, SKZ, SVS, SVZ, SWS, SOUT, ST = 44, 48, 52, 56, 60, 64, 68, 72, 76
    def r(a, n):
        return f"v[{a}:{a+n-1}]"
    def srd(s):
        return f"s[{s}:{s+3}]"
    def mksrd(s, ptr, size):
        A(f"s_mov_b32 s{s}, s{ptr}")
        A(f"s_mov_b32 s{s+1}, s{ptr+1}")
        A(f"s_mov_b32 s{s+2}, {size}")
        A(f"s_mov_b32 s{s+3}, 0x00020000")
    def unpack(dst, src, n):
        for i in range(n):
            A(f"v_lshlrev_b32 v{dst+2*i}, 16, v{src+i}")
            A(f"v_and_b32 v{dst+2*i+1}, s80, v{src+i}")
    def rope(i0, i1, dst):
        Clo, Chi, Slo, Shi = vC, vC + 8, vC + 16, vC + 24
        for i in range(i0, i1, 2):
            A(f"v_pk_mul_f32 {r(Clo+i,2)}, {r(vX+i,2)}, {r(Clo+i,2)}")
            A(f"v_pk_mul_f32 {r(Chi+i,2)}, {r(vX+8+i,2)}, {r(Chi+i,2)}")
        for i in range(i0, i1, 2):
            A(f"v_pk_fma_f32 {r(Clo+i,2)}, {r(vX+8+i,2)}, {r(Slo+i,2)}, {r(Clo+i,2)} neg_lo:[1,0,0] neg_hi:[1,0,0]")
            A(f"v_pk_fma_f32 {r(Chi+i,2)}, {r(vX+i,2)}, {r(Shi+i,2)}, {r(Chi+i,2)}")
        for i in range(i0, i1, 2):
            A(f"v_cvt_pk_bf16_f32 v{dst+i//2}, v{Clo+i}, v{Clo+i+1}")
            A(f"v_cvt_pk_bf16_f32 v{dst+4+i//2}, v{Chi+i}, v{Chi+i+1}")
    def load_cs(h, soff):
        b = vCS[h]
        A(f"buffer_load_dwordx4 {r(b,4)}, v{vOCS}, {srd(SC)}, {soff} offen offset:{h*1024} {csflags}")
        A(f"buffer_load_dwordx4 {r(b+4,4)}, v{vOCS}, {srd(SC)}, {soff} offen offset:{h*1024+128} {csflags}")
        A(f"buffer_load_dwordx4 {r(b+8,4)}, v{vOCS}, {srd(SS)}, {soff} offen offset:{h*1024} {csflags}")
        A(f"buffer_load_dwordx4 {r(b+12,4)}, v{vOCS}, {srd(SS)}, {soff} offen offset:{h*1024+128} {csflags}")
    def load_kz(h, soff):
        A(f"buffer_load_short_d16_hi v{vKZ[h]}, v{vOKZ}, {srd(SKZ)}, {soff} offen offset:{h*8} {scflags}")
        A(f"buffer_load_short_d16_hi v{vKS[h]}, v{vOKS}, {srd(SKS)}, {soff} offen offset:{h*8} {scflags}")
    def load_vs(soff):
        A(f"buffer_load_dwordx4 {r(vVS,4)}, v{vOVS}, {srd(SVS)}, {soff} offen {scflags}")
    def load_vz(soff):
        A(f"buffer_load_dwordx4 {r(vVZ,4)}, v{vOVS}, {srd(SVZ)}, {soff} offen {scflags}")

    A("L_consumer:")
    A("s_sub_u32 s3, s3, 1                        ; w")
    A("s_mov_b32 s80, 0xffff0000")
    A(f"s_mov_b32 s81, {hex(f2u(128 ** -0.5 * math.log2(math.e)))}")
    A("v_lshrrev_b32 v2, 4, v1                    ; g")
    A("v_bfe_u32 v3, v1, 1, 3")
    A("v_and_b32 v4, 1, v1                        ; a")
    A("v_lshl_add_u32 v5, v2, 1, v4               ; e = 2g+a")
    A(f"v_lshl_add_u32 v{vOKZ}, v3, 3, s3          ; 8*rho + w")
    A(f"v_lshlrev_b32 v{vOCS}, 8, v{vOKZ}")
    A(f"v_lshl_add_u32 v{vOCS}, v5, 4, v{vOCS}")
    A(f"v_lshlrev_b32 v{vOKZ}, 1, v{vOKZ}")
    A("s_lshl_b32 s7, s3, 12")
    A(f"v_lshrrev_b32 v{vAK0}, 5, v1")
    A(f"v_lshlrev_b32 v{vAK0}, 10, v{vAK0}          ; (g>>1)*1024")
    A(f"v_lshl_add_u32 v{vAK0}, v3, 7, v{vAK0}      ; + rho*128")
    A("v_and_b32 v5, 3, v5")
    A(f"v_lshl_add_u32 v{vAK0}, v5, 5, v{vAK0}      ; + (e&3)*32")
    A("v_lshrrev_b32 v5, 2, v3")
    A(f"v_lshl_add_u32 v{vAK0}, v5, 4, v{vAK0}      ; + (rho>>2)*16")
    A(f"v_add_u32 v{vAK0}, s7, v{vAK0}")
    A(f"v_xor_b32 v{vAK1}, 16, v{vAK0}")
    A(f"v_lshlrev_b32 v{vOWS}, 4, v1")
    A("s_lshl_b32 s7, s3, 10")
    A("s_add_u32 s7, s7, 0x8000")
    A(f"v_add_u32 v{vAV}, s7, v{vOWS}")
    A(f"v_add_u32 v{vASr}, {LDS_S}, v{vOWS}")
    A("s_lshl_b32 s7, s3, 2")
    A(f"v_add_u32 v{vASw}, s7, v{vASr}")
    A("v_lshrrev_b32 v3, 3, v1")
    A("v_and_b32 v4, 7, v1                        ; q")
    A(f"v_lshlrev_b32 v{vOVS}, 4, v3")
    A("s_lshl_b32 s7, s3, 1")
    A(f"v_add_u32 v{vOKS}, s7, v{vOVS}")
    A(f"v_lshlrev_b32 v{vOML}, 3, v4")
    A(f"v_lshl_add_u32 v5, v4, 8, v{vOVS}          ; q*256 + e'*16")
    A("v_bfe_u32 v2, v1, 3, 2")
    A("v_lshlrev_b32 v2, 1, v2")
    A("v_lshrrev_b32 v3, 5, v1")
    A("v_add_u32 v2, v2, v3                       ; c")
    A("v_lshlrev_b32 v2, 3, v2")
    A(f"v_lshl_add_u32 v{vOOUT}, v4, 8, v2")
    A("s_lshl_b32 s7, s3, 6")
    A(f"v_add_u32 v{vOOUT}, s7, v{vOOUT}")
    for k in vKZ + vKS:
        A(f"v_mov_b32 v{k}, 0")
    for i in range(4):
        A(f"v_mov_b32 v{vD+i}, -1")
    A("s_lshl_b32 s12, s4, 18")
    A("s_lshl_b32 s13, s6, 11")
    A("s_lshl_b32 s14, s5, 11")
    A("s_lshl_b32 s15, s6, 2")
    A("s_or_b32 s15, s15, s3")
    A("s_lshl_b32 s15, s15, 11")
    A("s_waitcnt lgkmcnt(0)")
    mksrd(SWS, 42, 0x200000)
    mksrd(ST, 16, 131072)
    A(f"buffer_load_dwordx4 {r(vP,4)}, v5, {srd(ST)}, s14 offen {qflags}")
    A(f"buffer_load_dwordx4 {r(vP+4,4)}, v5, {srd(ST)}, s14 offen offset:128 {qflags}")
    mksrd(SC, 30, 2048)
    mksrd(SS, 32, 2048)
    A(f"buffer_load_dwordx4 {r(vVU,4)}, v5, {srd(SC)}, 0 offen {qflags}")
    A(f"buffer_load_dwordx4 {r(vVU+4,4)}, v5, {srd(SC)}, 0 offen offset:128 {qflags}")
    A(f"buffer_load_dwordx4 {r(vVU+8,4)}, v5, {srd(SS)}, 0 offen {qflags}")
    A(f"buffer_load_dwordx4 {r(vVU+12,4)}, v5, {srd(SS)}, 0 offen offset:128 {qflags}")
    mksrd(SC, 34, 0 if nocs else 0x100000)
    mksrd(SS, 36, 0 if nocs else 0x100000)
    mksrd(SKS, 20, 0x80000)
    mksrd(SKZ, 22, 0x80000)
    mksrd(SVS, 26, 0x80000)
    mksrd(SVZ, 28, 0x80000)
    mksrd(SOUT, 38, 131072)
    load_cs(0, "s12"); load_kz(0, "s13"); load_cs(1, "s12"); load_kz(1, "s13"); load_vs("s13"); load_vz("s13")
    A("s_waitcnt vmcnt(14)")
    A(f"buffer_store_dwordx4 {r(vD,4)}, v{vOWS}, {srd(SWS)}, s15 offen sc1")
    A("s_mov_b64 exec, 0xff")
    A(f"buffer_store_dwordx2 {r(vD,2)}, v{vOML}, {srd(SWS)}, s15 offen offset:1024 sc1")
    A("s_mov_b64 exec, -1")
    unpack(vX, vP, 8)
    unpack(vC, vVU, 16)
    rope(0, 8, vQ)
    for i in range(20):
        A(f"v_mov_b32 v{vACC+i}, 0")
    A(f"v_mov_b32 v{vM}, 0xff7fffff")
    A(f"v_mov_b32 v{vL}, 0")
    A("s_mov_b32 s7, 0")
    A("L_blk:")
    A("s_add_u32 s12, s12, 0x4000")
    A("s_add_u32 s13, s13, 0x80")
    A("s_cmp_eq_u32 s7, 15")
    A("s_cselect_b32 s12, 0x40000000, s12")
    A("s_cselect_b32 s13, 0x40000000, s13")
    for h in range(2):
        A("s_waitcnt vmcnt(10)")
        unpack(vC, vCS[h], 16)
        load_cs(h, "s12")
        A("s_barrier")
        o = h * 16384
        A(f"ds_read_b128 {r(vX,4)}, v{vAK0} offset:{o}")
        A(f"ds_read_b128 {r(vX+8,4)}, v{vAK0} offset:{o+2048}")
        A(f"ds_read_b128 {r(vX+4,4)}, v{vAK1} offset:{o}")
        A(f"ds_read_b128 {r(vX+12,4)}, v{vAK1} offset:{o+2048}")
        A("s_waitcnt vmcnt(12)")
        A(f"v_mul_f32 v{vU}, s81, v{vKS[h]}")
        for part in range(2):
            A(f"s_waitcnt lgkmcnt({2 - 2*part})")
            for b in (vX + 4 * part, vX + 8 + 4 * part):
                for i in range(4):
                    A(f"v_cvt_f32_i32 v{b+i}, v{b+i}")
            for b in (vX + 4 * part, vX + 8 + 4 * part):
                for i in (0, 2):
                    A(f"v_pk_add_f32 {r(b+i,2)}, {r(b+i,2)}, {r(vKZ[h],2)} op_sel_hi:[1,0] neg_lo:[0,1] neg_hi:[0,1]")
            rope(4 * part, 4 * part + 4, vA)
        load_kz(h, "s13")
        A(f"v_mfma_f32_16x16x32_bf16 {r(vD,4)}, {r(vA,4)}, {r(vQ,4)}, 0")
        A(f"v_mfma_f32_16x16x32_bf16 {r(vD,4)}, {r(vA+4,4)}, {r(vQ+4,4)}, {r(vD,4)}")
        A("s_nop 7")
        A(f"v_add_f32_dpp v{vS}, v{vD+1}, v{vD} row_ror:8 row_mask:0xf bank_mask:0x3")
        A(f"v_add_f32_dpp v{vS}, v{vD+2}, v{vD+3} row_ror:8 row_mask:0xf bank_mask:0xc")
        A(f"v_mul_f32 v{vS}, v{vS}, v{vU}")
        A(f"ds_write_b32 v{vASw}, v{vS} offset:{h*1024}")
    A("s_waitcnt vmcnt(12)")
    unpack(vVU, vVS, 4)
    load_vs("s13")
    A("s_waitcnt lgkmcnt(0)")
    def vread(h):
        for t in range(4):
            A(f"ds_read_b128 {r(vX+4*t,4)}, v{vAV} offset:{(4*h+t)*4096}")
    def vcvt(ts):
        for t in ts:
            for j in range(4):
                A(f"v_cvt_f32_i32 v{vX+4*t+j}, v{vX+4*t+j}")
    def vpack(pr):
        for j in range(4):
            A(f"v_cvt_pk_bf16_f32 v{vA+2*j+pr}, v{vX+8*pr+j}, v{vX+8*pr+4+j}")
    def vmfma(h):
        A(f"v_mfma_f32_16x16x16_bf16 {r(vCOR,4)}, {r(vVZ+2*h,2)}, {r(vPP+2*h,2)}, {r(vCOR,4)}")
        for j in range(4):
            A(f"v_mfma_f32_16x16x16_bf16 {r(vACC+4*j,4)}, {r(vA+2*j,2)}, {r(vPP+2*h,2)}, {r(vACC+4*j,4)}")
    A("s_barrier")
    A(f"ds_read_b128 {r(vP,4)}, v{vASr}")
    A(f"ds_read_b128 {r(vP+4,4)}, v{vASr} offset:1024")
    vread(0)
    A("s_waitcnt lgkmcnt(4)")
    A(f"v_max3_f32 v{vT}, v{vP}, v{vP+1}, v{vP+2}")
    A(f"v_max3_f32 v{vU}, v{vP+3}, v{vP+4}, v{vP+5}")
    A(f"v_max3_f32 v{vT}, v{vT}, v{vP+6}, v{vP+7}")
    A(f"v_max3_f32 v{vT}, v{vT}, v{vU}, v{vM}")
    A("s_waitcnt lgkmcnt(2)")
    vcvt([0])
    A(f"v_max_f32_dpp v{vT}, v{vT}, v{vT} row_ror:8 row_mask:0xf bank_mask:0xf")
    A(f"v_mov_b32 v{vU}, v{vT}")
    vcvt([1])
    A(f"v_permlane16_swap_b32 v{vT}, v{vU}")
    A(f"v_max_f32 v{vT}, v{vT}, v{vU}")
    A(f"v_mov_b32 v{vU}, v{vT}")
    vpack(0)
    A(f"v_permlane32_swap_b32 v{vT}, v{vU}")
    A(f"v_max_f32 v{vT}, v{vT}, v{vU}")
    A(f"v_sub_f32 v{vAL}, v{vM}, v{vT}")
    A(f"v_mov_b32 v{vM}, v{vT}")
    A(f"v_exp_f32 v{vAL}, v{vAL}")
    for i in range(0, 8, 2):
        A(f"v_pk_add_f32 {r(vP+i,2)}, {r(vP+i,2)}, {r(vM,2)} op_sel_hi:[1,0] neg_lo:[0,1] neg_hi:[0,1]")
    for i in range(8):
        A(f"v_exp_f32 v{vP+i}, v{vP+i}")
    for i in range(0, 16, 2):
        A(f"v_pk_mul_f32 {r(vACC+i,2)}, {r(vACC+i,2)}, {r(vAL,2)} op_sel_hi:[1,0]")
    A(f"v_mul_f32 v{vCOR}, v{vCOR}, v{vAL}")
    for i in range(0, 8, 2):
        A(f"v_pk_mul_f32 {r(vVU+i,2)}, {r(vVU+i,2)}, {r(vP+i,2)}")
    for i in range(4):
        A(f"v_cvt_pk_bf16_f32 v{vPP+i}, v{vVU+2*i}, v{vVU+2*i+1}")
    A("s_waitcnt lgkmcnt(0)")
    vcvt([2, 3])
    vpack(1)
    A(f"v_pk_add_f32 {r(vP,2)}, {r(vP,2)}, {r(vP+2,2)}")
    A(f"v_pk_add_f32 {r(vP+4,2)}, {r(vP+4,2)}, {r(vP+6,2)}")
    vmfma(0)
    A(f"v_pk_add_f32 {r(vP,2)}, {r(vP,2)}, {r(vP+4,2)}")
    A(f"v_fma_f32 v{vL}, v{vL}, v{vAL}, v{vP}")
    A(f"v_add_f32 v{vL}, v{vL}, v{vP+1}")
    A("s_barrier")
    vread(1)
    A("s_waitcnt lgkmcnt(2)")
    vcvt([0, 1])
    vpack(0)
    A("s_waitcnt lgkmcnt(0)")
    vcvt([2, 3])
    vpack(1)
    A("s_add_u32 s7, s7, 1")
    A("s_cmp_lt_u32 s7, 16")
    vmfma(1)
    load_vz("s13")
    A("s_cbranch_scc1 L_blk")
    A("; ---------------- merge ----------------")
    A(f"v_mov_b32 v2, {LDS_T}")
    A("ds_read_b32 v3, v2")
    A(f"v_add_f32_dpp v{vL}, v{vL}, v{vL} row_ror:8 row_mask:0xf bank_mask:0xf")
    A(f"v_mov_b32 v{vU}, v{vL}")
    A("s_nop 1")
    A(f"v_permlane16_swap_b32 v{vL}, v{vU}")
    A(f"v_add_f32 v{vL}, v{vL}, v{vU}")
    A(f"v_mov_b32 v{vU}, v{vL}")
    A("s_nop 1")
    A(f"v_permlane32_swap_b32 v{vL}, v{vU}")
    A(f"v_add_f32 v{vL}, v{vL}, v{vU}")
    for i in range(0, 16, 2):
        A(f"v_pk_add_f32 {r(vACC+i,2)}, {r(vACC+i,2)}, {r(vCOR,2)} op_sel_hi:[1,0] neg_lo:[0,1] neg_hi:[0,1]")
    A("s_nop 1")
    for j in range(4):
        A(f"v_permlane32_swap_b32 v{vACC+4*j}, v{vACC+4*j+1}")
        A(f"v_permlane32_swap_b32 v{vACC+4*j+2}, v{vACC+4*j+3}")
    A("s_waitcnt lgkmcnt(0)")
    A("v_readfirstlane_b32 s7, v3")
    for j in range(4):
        A(f"v_add_f32_dpp v{vD+j}, v{vACC+4*j+1}, v{vACC+4*j} row_ror:8 row_mask:0xf bank_mask:0x3")
        A(f"v_add_f32_dpp v{vD+j}, v{vACC+4*j+2}, v{vACC+4*j+3} row_ror:8 row_mask:0xf bank_mask:0xc")
    A("s_cmp_eq_u32 s7, 3")
    A("s_cbranch_scc1 L_merge")
    A(f"buffer_store_dwordx4 {r(vD,4)}, v{vOWS}, {srd(SWS)}, s15 offen sc1")
    A("s_mov_b64 exec, 0xff")
    A(f"buffer_store_dwordx2 {r(vM,2)}, v{vOML}, {srd(SWS)}, s15 offen offset:1024 sc1")
    if stamps:
        A("s_branch L_stamp")
    A("s_endpgm")
    A("L_merge:")
    A("s_xor_b32 s8, s15, 0x2000")
    A("s_xor_b32 s9, s15, 0x4000")
    A("s_xor_b32 s10, s15, 0x6000")
    A("s_mov_b32 s11, 0")
    vO = [vC, vC + 4, vC + 8]; vML = [vC + 12, vC + 14, vC + 16]
    A("L_poll:")
    for k in range(3):
        A(f"buffer_load_dwordx4 {r(vO[k],4)}, v{vOWS}, {srd(SWS)}, s{8+k} offen sc1")
        A(f"buffer_load_dwordx2 {r(vML[k],2)}, v{vOML}, {srd(SWS)}, s{8+k} offen offset:1024 sc1")
    A("s_add_u32 s11, s11, 1")
    A("s_waitcnt vmcnt(0)")
    A(f"v_max_u32 v2, v{vC}, v{vC+1}")
    for i in range(2, 18, 2):
        A(f"v_max3_u32 v2, v2, v{vC+i}, v{vC+i+1}")
    A("v_cmp_eq_u32 vcc, -1, v2")
    A("s_cmp_lt_u32 s11, 0x100000")
    A("s_cselect_b64 vcc, vcc, 0")
    A("s_cbranch_vccnz L_poll")
    A(f"v_max3_f32 v{vT}, v{vM}, v{vML[0]}, v{vML[1]}")
    A(f"v_max_f32 v{vT}, v{vT}, v{vML[2]}")
    ms = [vM] + vML
    os_ = [vD] + vO
    for k in range(4):
        A(f"v_sub_f32 v{ms[k]}, v{ms[k]}, v{vT}")
    for k in range(4):
        A(f"v_exp_f32 v{ms[k]}, v{ms[k]}")
    A("s_nop 0")
    for k in range(4):
        A(f"v_mul_f32 v{ms[k]+1}, v{ms[k]+1}, v{ms[k]}")
    for k in range(4):
        for i in (0, 2):
            A(f"v_pk_mul_f32 {r(os_[k]+i,2)}, {r(os_[k]+i,2)}, {r(ms[k],2)} op_sel_hi:[1,0]")
    A(f"v_add_f32 v2, v{ms[0]+1}, v{ms[1]+1}")
    A(f"v_add_f32 v3, v{ms[2]+1}, v{ms[3]+1}")
    A("v_add_f32 v2, v2, v3")
    A("v_rcp_f32 v2, v2")
    for i in (0, 2):
        A(f"v_pk_add_f32 {r(os_[0]+i,2)}, {r(os_[0]+i,2)}, {r(os_[1]+i,2)}")
        A(f"v_pk_add_f32 {r(os_[2]+i,2)}, {r(os_[2]+i,2)}, {r(os_[3]+i,2)}")
    for i in (0, 2):
        A(f"v_pk_add_f32 {r(os_[0]+i,2)}, {r(os_[0]+i,2)}, {r(os_[2]+i,2)}")
    for i in (0, 2):
        A(f"v_pk_mul_f32 {r(os_[0]+i,2)}, {r(os_[0]+i,2)}, v[2:3] op_sel_hi:[1,0]")
    A(f"v_cvt_pk_bf16_f32 v4, v{vD}, v{vD+1}")
    A(f"v_cvt_pk_bf16_f32 v5, v{vD+2}, v{vD+3}")
    A(f"buffer_store_dwordx2 v[4:5], v{vOOUT}, {srd(SOUT)}, s14 offen")
    if stamps:
        A("L_stamp:")
        A("s_waitcnt vmcnt(0)")
        A("s_memrealtime s[86:87]")
        A("s_getreg_b32 s88, hwreg(HW_REG_XCC_ID)")
        A("s_lshl_b32 s7, s7, 8")
        A("s_or_b32 s88, s88, s7")
        A("s_waitcnt lgkmcnt(0)")
        A("s_mov_b64 exec, 1")
        A("v_mov_b32 v8, s84")
        A("v_mov_b32 v9, s85")
        A("v_mov_b32 v10, s86")
        A("v_mov_b32 v11, s87")
        A("v_mov_b32 v12, s88")
        A("v_mov_b32 v13, s11")
        A("s_lshl_b32 s89, s2, 2")
        A("s_or_b32 s89, s89, s3")
        A("s_lshl_b32 s89, s89, 5")
        A("s_add_u32 s89, s89, 0x400000")
        A("v_mov_b32 v2, 0")
        A(f"s_mov_b32 s{SWS+2}, 0x800000")
        A(f"buffer_store_dwordx4 v[8:11], v2, {srd(SWS)}, s89 offen")
        A(f"buffer_store_dwordx2 v[12:13], v2, {srd(SWS)}, s89 offen offset:16")
    A("L_end:")
    A("s_endpgm")
    A('.section .rodata,"a"')
    A(".p2align 6")
    A(f".amdhsa_kernel {KNAME}")
    A("  .amdhsa_next_free_vgpr 176")
    A("  .amdhsa_next_free_sgpr 96")
    A("  .amdhsa_accum_offset 176")
    A("  .amdhsa_group_segment_fixed_size 0")
    A("  .amdhsa_kernarg_size 112")
    A("  .amdhsa_user_sgpr_count 2")
    A("  .amdhsa_user_sgpr_kernarg_segment_ptr 1")
    A("  .amdhsa_system_sgpr_workgroup_id_x 1")
    A("  .amdhsa_float_denorm_mode_32 3")
    A(".end_amdhsa_kernel")
    return "\n".join(L) + "\n"

if __name__ == "__main__":
    kw = eval("dict(" + (sys.argv[2] if len(sys.argv) > 2 else "") + ")")
    open(sys.argv[1], "w").write(gen(**kw))
```

```python
import sys, math, struct
KNAME = "standalone__kv_cache_quant_pre_rope_vs_post_rope__sampling_kernel"
HEADER = open("standalone__kv_cache_quant_pre_rope_vs_post_rope__sampling.s.ref").read().split("; Override launch")[0]

def f2u(x):
    return struct.unpack("<I", struct.pack("<f", x))[0]

def gen(DK=32, DV=24, nt="nt", TS=75, PA=14, VSU=10, stamps=False, nocs=False, touch=1, mpre=True, spin=1 << 22,
        l2pf=1, nostore=False):
    assert 17 <= DK <= 32 and 17 <= DV <= 32 and TS <= 79 and 8 <= PA <= 15
    L = []
    def A(s=""):
        L.append(s if (s.endswith(":") or s.startswith(".") or s.startswith(";")) else "    " + s)
    RING = 0x18000
    LDS_S = RING
    LDS_SC = LDS_S + 0x8000
    LDS_Q = LDS_SC + 0x2000
    LDS_MX = LDS_Q + 4096
    LDS_F = LDS_MX + 256
    lds = LDS_F + 64
    WS_ML = 0x200000
    WS_EP = 0x210000
    L.append(HEADER.rstrip())
    A(f"; @launch grid=(256,1,1) block=(320,1,1) lds={lds}")
    A('.amdgcn_target "amdgcn-amd-amdhsa--gfx950"')
    A(".text")
    A(f".globl {KNAME}")
    A(".p2align 8")
    A(f".type {KNAME},@function")
    A(f"{KNAME}:")
    A("s_cmp_ge_u32 s2, 256")
    A("s_cbranch_scc1 L_end")
    if stamps:
        A("s_memrealtime s[84:85]")
    A("s_load_dwordx16 s[16:31], s[0:1], 0")
    A("s_load_dwordx8 s[32:39], s[0:1], 64")
    A("s_load_dwordx4 s[40:43], s[0:1], 96")
    A("v_lshrrev_b32 v2, 6, v0")
    A("v_and_b32 v1, 63, v0")
    A("v_readfirstlane_b32 s3, v2")
    A("s_and_b32 s4, s2, 7                        ; member m")
    A("s_lshr_b32 s5, s2, 3")
    A("v_lshrrev_b32 v2, 3, v1                    ; lane>>3")
    A("v_and_b32 v3, 7, v1                        ; lane&7")
    A("v_lshrrev_b32 v4, 5, v1                    ; lane>>5")
    A(f"v_mov_b32 v23, {LDS_F}")
    A("s_mov_b32 s83, 0")
    A("s_cmp_lg_u32 s3, 0")
    A("s_cbranch_scc1 L_consumer")
    A("s_setprio 3")
    A("v_and_b32 v5, 15, v1")
    A("v_lshl_add_u32 v5, v5, 2, v23")
    A("v_mov_b32 v6, 0")
    A("ds_write_b32 v5, v6")
    A("v_xor_b32 v5, v3, v4")
    A("v_lshlrev_b32 v5, 4, v5")
    A("v_lshl_add_u32 v10, v2, 12, v5")
    A("v_lshlrev_b32 v5, 2, v4")
    A("v_xor_b32 v5, v5, v3")
    A("v_lshlrev_b32 v5, 4, v5")
    A("v_lshl_add_u32 v11, v2, 11, v5")
    A("s_lshl_b32 s7, s5, 22")
    A("s_lshl_b32 s6, s4, 15")
    A("s_add_u32 s7, s7, s6                       ; g*4M + m*32K")
    A("s_sub_u32 s10, 0x400000, s6")
    A("s_mov_b32 s11, 0x00020000")
    A("s_lshr_b32 s6, s6, 1")
    A(f"s_sub_u32 s14, {0 if nocs else 0x100000}, " + ("0" if nocs else "s6"))
    A("s_mov_b32 s15, 0x00020000")
    A("s_mov_b32 s62, s14")
    A("s_mov_b32 s63, 0x00020000")
    A("s_mov_b32 s44, 0")
    A("s_mov_b32 s45, 2048")
    A("s_mov_b32 s46, 0")
    A("s_mov_b32 s47, 0")
    A("s_mov_b32 s48, 0")
    A("v_mov_b32 v12, 0")
    A("v_mov_b32 v13, 0")
    A("v_mov_b32 v14, 0")
    A("v_mov_b32 v15, 0")
    A("s_waitcnt lgkmcnt(0)")
    A("s_barrier")
    A("s_add_u32 s8, s18, s7")
    A("s_addc_u32 s9, s19, 0")
    A("s_add_u32 s12, s34, s6")
    A("s_addc_u32 s13, s35, 0")
    A("s_add_u32 s60, s36, s6")
    A("s_addc_u32 s61, s37, 0")
    cnt = [0]
    def stamp():
        if stamps:
            A("s_memrealtime s[50:51]")
            A("s_lshl_b64 exec, 1, s47")
            A("s_cmp_lt_u32 s47, 64")
            A("s_waitcnt lgkmcnt(0)")
            A(f"s_cbranch_scc0 L_st{cnt[0]}")
            A("v_mov_b32 v8, s50")
            A(f"s_branch L_su{cnt[0]}")
            A(f"L_st{cnt[0]}:")
            A("v_mov_b32 v9, s50")
            A(f"L_su{cnt[0]}:")
            A("s_mov_b64 exec, -1")
            cnt[0] += 1
    def publish():
        stamp()
        A("v_mov_b32 v6, s47")
        A("ds_write_b32 v23, v6 offset:32")
    stalls = []
    def body(name, D, kind, soff):
        A(f"L_{name}:")
        A("v_min3_u32 v7, v12, v13, v14")
        A("v_min_u32 v7, v7, v15")
        A("s_sub_u32 s52, s46, 5")
        A("v_readfirstlane_b32 s53, v7")
        A("s_mov_b32 m0, s48")
        A("s_cmp_lt_i32 s53, s52")
        A(f"s_cbranch_scc1 L_{name}_full")
        stalls.append(name)
        for p in range(16):
            if p:
                if kind == "cs" and p == 8:
                    A(f"s_addk_i32 m0, {hex(8192 - 7 * 896)}")
                else:
                    A("s_addk_i32 m0, 0x380")
            A(f"s_waitcnt vmcnt({D-1})")
            if p == D - 17:
                publish()
            if p == 13:
                A("ds_read_b128 v[12:15], v23")
            if kind == "cs":
                A(f"buffer_load_dwordx4 v11, {'s[12:15]' if p < 8 else 's[60:63]'}, {soff} offen offset:{128*(p&7)} lds")
            else:
                A(f"buffer_load_dwordx4 v10, s[8:11], {soff} offen offset:{128*p} {nt} lds")
        A("s_mov_b32 s47, s46")
        A("s_add_u32 s46, s46, 1")
        A("s_add_u32 s48, s48, 0x4000")
        if name in ("kb", "v"):
            A(f"s_cmp_eq_u32 s48, {RING}")
            A("s_cselect_b32 s48, 0, s48")
    body("ka", DK, "k", "s44")
    A("s_lshr_b32 s49, s44, 1")
    body("cs", DK, "cs", "s49")
    A("s_add_u32 s54, s44, 0x200000")
    body("kb", DK, "k", "s54")
    A("s_add_u32 s44, s44, s45")
    A(f"s_xor_b32 s45, s45, {2048 ^ (0x40000 - 2048)}")
    A("s_cmp_lt_u32 s46, 48")
    A("s_cbranch_scc1 L_ka")
    A("s_add_u32 s8, s24, s7")
    A("s_addc_u32 s9, s25, 0")
    A("s_mov_b32 s44, 0")
    A(f"s_mov_b32 s55, {TS}")
    body("v", DV, "k", "s44")
    A("s_add_u32 s44, s44, s45")
    A(f"s_xor_b32 s45, s45, {2048 ^ (0x40000 - 2048)}")
    A("s_cmp_lg_u32 s46, s55")
    A("s_cbranch_scc1 L_v")
    A("s_cmp_eq_u32 s46, 80")
    A("s_cbranch_scc1 L_ldone")
    A("s_mov_b32 s57, 1")
    A("s_lshl_b32 s6, s5, 2")
    A("s_atomic_add s57, s[40:41], s6 glc")
    A("s_mov_b32 s55, 80")
    A("s_branch L_v")
    A("L_ldone:")
    A("s_waitcnt lgkmcnt(0)")
    A("v_mov_b32 v16, s57")
    A("ds_write_b32 v23, v16 offset:36")
    A("s_waitcnt vmcnt(16)")
    publish()
    A("s_mov_b32 s47, 80")
    A("s_waitcnt vmcnt(0)")
    publish()
    if stamps:
        A("s_mov_b32 s60, s42")
        A("s_mov_b32 s61, s43")
        A("s_mov_b32 s62, 0x800000")
        A("s_mov_b32 s63, 0x00020000")
        A("s_lshl_b32 s55, s2, 10")
        A("s_add_u32 s55, s55, 0x500000")
        A("v_lshlrev_b32 v2, 2, v1")
        A("buffer_store_dword v8, v2, s[60:63], s55 offen")
        A("buffer_store_dword v9, v2, s[60:63], s55 offen offset:256")
        A("v_mov_b32 v10, s83")
        A("buffer_store_dword v10, v2, s[60:63], s55 offen offset:512")
    A("s_endpgm")
    for name in stalls:
        A(f"L_{name}_full:")
        A("ds_read_b128 v[12:15], v23")
        A("s_add_u32 s83, s83, 1")
        A(f"s_cmp_gt_u32 s83, {spin}")
        A("s_cbranch_scc1 L_end")
        A("s_waitcnt lgkmcnt(0)")
        A(f"s_branch L_{name}")
    vBK, vAK0, vAK1, vBCS, vACS, vASw, vAKZ, vAKS, vOWS, vOML, vOOUT, vAD = range(6, 18)
    vBV, vAV, vASr, vAVS = vBK, vAK0, vAK1, vAKS
    vM, vL, vL2, vT, vF = 18, 19, 20, 22, 23
    vMB = 21
    vKZ, vKS, vU, vS = 24, 25, 26, 27
    vD = 28; vQ = 32; vA = 48; vX = 56
    vR = 72; vC = 88; vW = 120
    vP = 72; vPP = 80; vVS = 84; vVZ = 32; vVU = 36; vMB2 = 44; vN = 45
    vO = 88; vML = vO + 28
    vACC = 144; vCOR = 160; vDA = 164; vMA = 168
    NV = 172
    SWS, SOUT, ST = 68, 72, 76
    sEP = 82
    def r(a, n):
        return f"v[{a}:{a+n-1}]"
    def srd(s):
        return f"s[{s}:{s+3}]"
    def mksrd(s, ptr, size):
        A(f"s_mov_b32 s{s}, s{ptr}")
        A(f"s_mov_b32 s{s+1}, s{ptr+1}")
        A(f"s_mov_b32 s{s+2}, {size}")
        A(f"s_mov_b32 s{s+3}, 0x00020000")
    def unpack(dst, src, n):
        for i in range(n):
            A(f"v_lshlrev_b32 v{dst+2*i}, 16, v{src+i}")
            A(f"v_and_b32 v{dst+2*i+1}, s80, v{src+i}")
    def rope(i0, i1, dst):
        Clo, Chi, Slo, Shi = vC, vC + 8, vC + 16, vC + 24
        for i in range(i0, i1, 2):
            A(f"v_pk_mul_f32 {r(vW+i,2)}, {r(vX+i,2)}, {r(Clo+i,2)}")
            A(f"v_pk_mul_f32 {r(vW+8+i,2)}, {r(vX+8+i,2)}, {r(Chi+i,2)}")
        for i in range(i0, i1, 2):
            A(f"v_pk_fma_f32 {r(vW+i,2)}, {r(vX+8+i,2)}, {r(Slo+i,2)}, {r(vW+i,2)} neg_lo:[1,0,0] neg_hi:[1,0,0]")
            A(f"v_pk_fma_f32 {r(vW+8+i,2)}, {r(vX+i,2)}, {r(Shi+i,2)}, {r(vW+8+i,2)}")
        for i in range(i0, i1, 2):
            A(f"v_cvt_pk_bf16_f32 v{dst+i//2}, v{vW+i}, v{vW+i+1}")
            A(f"v_cvt_pk_bf16_f32 v{dst+4+i//2}, v{vW+8+i}, v{vW+8+i+1}")
    wl = [0]
    def guard():
        A("s_add_u32 s83, s83, 1")
        A(f"s_cmp_gt_u32 s83, {spin}")
        A("s_cbranch_scc1 L_end")
    def wait_landed():
        k = wl[0]; wl[0] += 1
        A("s_cmp_gt_u32 s13, s12")
        A(f"s_cbranch_scc1 L_wl{k}_ok")
        A(f"L_wl{k}:")
        A(f"ds_read_b32 v{vT}, v{vF} offset:32")
        guard()
        A("s_waitcnt lgkmcnt(0)")
        A(f"v_readfirstlane_b32 s13, v{vT}")
        A("s_cmp_gt_u32 s13, s12")
        A(f"s_cbranch_scc0 L_wl{k}")
        A(f"L_wl{k}_ok:")
    def set_done(inc):
        A("s_add_u32 s6, s12, 1")
        A(f"v_mov_b32 v{vT}, s6")
        A(f"ds_write_b32 v{vAD}, v{vT}")
        A(f"s_add_u32 s12, s12, {inc}")
    def wg_sync(val):
        k = wl[0]; wl[0] += 1
        A(f"v_mov_b32 v{vT}, {val}")
        A("s_waitcnt vmcnt(0) lgkmcnt(0)")
        A(f"ds_write_b32 v{vAD}, v{vT} offset:16")
        A(f"L_ws{k}:")
        A(f"ds_read_b128 {r(vD,4)}, v{vF} offset:16")
        guard()
        A("s_waitcnt lgkmcnt(0)")
        A(f"v_min3_u32 v{vT}, v{vD}, v{vD+1}, v{vD+2}")
        A(f"v_min_u32 v{vT}, v{vT}, v{vD+3}")
        A("s_nop 0")
        A(f"v_readfirstlane_b32 s6, v{vT}")
        A(f"s_cmp_ge_u32 s6, {val}")
        A(f"s_cbranch_scc0 L_ws{k}")
    def scales(ptrs, base):
        A(f"v_lshlrev_b32 v{vT}, 4, v3")
        A(f"v_lshl_add_u32 v{vT}, v2, 10, v{vT}")
        A("s_lshl_b32 s6, s5, 14")
        A("s_lshl_b32 s7, s4, 7")
        A("s_add_u32 s6, s6, s7")
        A("s_add_u32 s7, s6, 8192")
        A(f"s_mov_b32 s{ST+2}, 0x80000")
        for k, ptr in enumerate(ptrs):
            A(f"s_mov_b32 m0, {base + k*2048}")
            A(f"s_mov_b32 s{ST}, s{ptr}")
            A(f"s_mov_b32 s{ST+1}, s{ptr+1}")
            A(f"buffer_load_dwordx4 v{vT}, {srd(ST)}, s6 offen lds")
            A("s_addk_i32 m0, 0x400")
            A("s_nop 0")
            A(f"buffer_load_dwordx4 v{vT}, {srd(ST)}, s7 offen lds")

    A("L_consumer:")
    A("s_sub_u32 s3, s3, 1                        ; w")
    A("s_mov_b32 s80, 0xffff0000")
    A(f"s_mov_b32 s81, {hex(f2u(128 ** -0.5 * math.log2(math.e)))}")
    A("s_lshl_b32 s14, s5, 12")
    A(f"v_lshlrev_b32 v{vOWS}, 4, v1")
    A(f"s_mov_b32 s{ST+3}, 0x00020000")
    A("s_lshl_b32 s94, s5, 7")
    A(f"s_add_u32 s94, s94, {WS_EP}")
    A("s_barrier")
    A("s_waitcnt lgkmcnt(0)")
    A(f"s_load_dword s{sEP}, s[42:43], s94")
    A("s_cmp_lg_u32 s3, 0")
    A("s_cbranch_scc1 L_notq")
    A(f"v_lshlrev_b32 v{vT}, 4, v3")
    A(f"v_lshl_add_u32 v{vT}, v2, 8, v{vT}          ; q*256 + e*16")
    A(f"s_mov_b32 s{ST}, s30")
    A(f"s_mov_b32 s{ST+1}, s31")
    A(f"s_mov_b32 s{ST+2}, 2048")
    A(f"buffer_load_dwordx4 {r(vR,4)}, v{vT}, {srd(ST)}, 0 offen")
    A(f"buffer_load_dwordx4 {r(vR+4,4)}, v{vT}, {srd(ST)}, 0 offen offset:128")
    A(f"s_mov_b32 s{ST}, s32")
    A(f"s_mov_b32 s{ST+1}, s33")
    A(f"buffer_load_dwordx4 {r(vR+8,4)}, v{vT}, {srd(ST)}, 0 offen")
    A(f"buffer_load_dwordx4 {r(vR+12,4)}, v{vT}, {srd(ST)}, 0 offen offset:128")
    A(f"s_mov_b32 s{ST}, s16")
    A(f"s_mov_b32 s{ST+1}, s17")
    A(f"s_mov_b32 s{ST+2}, 131072")
    for k in range(4):
        A(f"buffer_load_dwordx4 {r(vACC+4*k,4)}, v{vT}, {srd(ST)}, s14 offen offset:{(k >> 1)*2048 + (k & 1)*128}")
    A("s_branch L_roles")
    A("L_notq:")
    A("s_cmp_lg_u32 s3, 1")
    A("s_cbranch_scc1 L_notsc")
    scales((22, 20), LDS_SC)
    A("s_branch L_roles")
    A("L_notsc:")
    if touch:
        A("s_cmp_lg_u32 s3, 3")
        A("s_cbranch_scc1 L_roles")
        A("s_lshl_b32 s6, s5, 22")
        A("s_add_u32 s7, s6, 0x200000")
        A("s_load_dword s95, s[18:19], s7")
        A("s_load_dword s95, s[24:25], s6")
        A("s_load_dword s95, s[24:25], s7")
        A("s_load_dword s95, s[26:27], 0")
        A("s_load_dword s95, s[28:29], 0")
        A("s_load_dword s95, s[38:39], 0")
        A("s_load_dword s95, s[42:43], 0")
    A("L_roles:")
    A("v_bfe_u32 v5, v1, 1, 3")
    A(f"v_lshl_add_u32 v{vAKZ}, v5, 3, s3")
    A(f"v_lshlrev_b32 v{vAKZ}, 1, v{vAKZ}")
    A(f"v_add_u32 v{vAKZ}, {LDS_SC}, v{vAKZ}")
    A(f"v_lshl_add_u32 v{vAKS}, v2, 3, s3")
    A(f"v_lshlrev_b32 v{vAKS}, 1, v{vAKS}")
    A(f"v_add_u32 v{vAKS}, {LDS_SC + 2048}, v{vAKS}")
    A(f"v_lshrrev_b32 v{vT}, 4, v1")
    A(f"v_and_b32 v{vU}, 1, v1")
    A(f"v_lshl_add_u32 v{vT}, v{vT}, 1, v{vU}       ; e = 2g+a")
    A(f"v_and_b32 v{vU}, 4, v5")
    A(f"v_xor_b32 v{vU}, v{vU}, v{vT}")
    A(f"v_lshlrev_b32 v{vU}, 4, v{vU}")
    A(f"v_lshl_add_u32 v{vBCS}, v5, 7, v{vU}")
    A("s_lshl_b32 s7, s3, 11")
    A("s_add_u32 s7, s7, 0x4000")
    A(f"v_add_u32 v{vBCS}, s7, v{vBCS}")
    A("s_lshl_b32 s7, s3, 12")
    A(f"v_lshlrev_b32 v{vBK}, 10, v4               ; (g>>1)*1024")
    A(f"v_lshl_add_u32 v{vBK}, v5, 7, v{vBK}        ; + rho*128")
    A(f"v_and_b32 v{vT}, 3, v{vT}")
    A(f"v_lshl_add_u32 v{vBK}, v{vT}, 5, v{vBK}     ; + (e&3)*32")
    A(f"v_lshrrev_b32 v{vT}, 2, v5")
    A(f"v_lshl_add_u32 v{vBK}, v{vT}, 4, v{vBK}     ; + (rho>>2)*16")
    A(f"v_add_u32 v{vBK}, s7, v{vBK}")
    A("s_lshl_b32 s7, s3, 2")
    A(f"v_add_u32 v{vAD}, s7, v{vF}")
    A(f"s_add_u32 s7, s7, {LDS_S}")
    A(f"v_add_u32 v{vASw}, s7, v{vOWS}")
    A(f"v_mov_b32 v{vKZ}, 0")
    A(f"v_mov_b32 v{vKS}, 0")
    A(f"v_mov_b32 v{vM}, 0xff7fffff")
    A(f"v_mov_b32 v{vMB}, 0xff7fffff")
    A("s_mov_b32 s12, 1")
    A("s_mov_b32 s13, 0")
    A("s_mov_b32 s8, 0")
    A("s_mov_b32 s9, 8")
    A("s_cmp_eq_u32 s3, 3")
    A(f"s_cselect_b32 s10, {3 * VSU + 1}, 0")
    def l2pf_addr():
        A("s_lshr_b32 s6, s5, 2")
        A("s_lshl_b32 s6, s6, 3")
        A("s_add_u32 s6, s6, s4")
        A("s_lshl_b32 s6, s6, 14")
        A("s_and_b32 s7, s5, 3")
        A("s_lshl_b32 s7, s7, 12")
        A("s_add_u32 s6, s6, s7")
    if l2pf == 2 or l2pf == 3:
        A("s_cmp_lt_u32 s3, 2")
        A("s_cbranch_scc1 L_nopf")
        l2pf_addr()
        A("s_cmp_eq_u32 s3, 2")
        A("s_cselect_b32 s64, s34, s36")
        A("s_cselect_b32 s65, s35, s37")
        A("s_add_u32 s64, s64, s6")
        A("s_addc_u32 s65, s65, 0")
        step = 128 if l2pf == 2 else 64
        for k in range(4096 // step):
            A(f"s_load_dword s95, s[64:65], {k * step}")
        A("L_nopf:")
    A("s_cmp_lg_u32 s3, 0")
    A("s_cbranch_scc1 L_qdone")
    A("s_waitcnt vmcnt(4)")
    unpack(vC, vR, 16)
    A(f"v_lshl_add_u32 v{vT}, v3, 3, v2")
    A(f"v_lshlrev_b32 v{vT}, 4, v{vT}")
    A(f"v_add_u32 v{vT}, {LDS_Q}, v{vT}")
    for hb in range(2):
        A(f"s_waitcnt vmcnt({2 - 2*hb})")
        unpack(vX, vACC + 8 * hb, 8)
        rope(0, 8, vQ + 8 * hb)
        A(f"ds_write_b128 v{vT}, {r(vQ+8*hb,4)} offset:{2048*hb}")
        A(f"ds_write_b128 v{vT}, {r(vQ+8*hb+4,4)} offset:{2048*hb+1024}")
    A("L_qdone:")
    wg_sync(1)
    A(f"v_add_u32 v{vU}, {LDS_Q}, v{vOWS}")
    for k in range(4):
        A(f"ds_read_b128 {r(vQ+4*k,4)}, v{vU} offset:{k*1024}")
    if l2pf == 1:
        A("s_cmp_lg_u32 s3, 2")
        A("s_cbranch_scc1 L_nopf")
        l2pf_addr()
        A(f"v_lshlrev_b32 v{vT}, 7, v1")
        A(f"s_mov_b32 s{ST}, s34")
        A(f"s_mov_b32 s{ST+1}, s35")
        A(f"s_mov_b32 s{ST+2}, 0x100000")
        A("s_mov_b32 exec_hi, 0")
        A(f"buffer_load_dword v{vACC}, v{vT}, {srd(ST)}, s6 offen")
        A(f"s_mov_b32 s{ST}, s36")
        A(f"s_mov_b32 s{ST+1}, s37")
        A(f"buffer_load_dword v{vACC+1}, v{vT}, {srd(ST)}, s6 offen")
        A("s_mov_b64 exec, -1")
        A("L_nopf:")
    A("L_kunit:")
    A(f"v_add_u32 v{vAK0}, s8, v{vBK}")
    A(f"v_add_u32 v{vACS}, s8, v{vBCS}")
    A(f"v_xor_b32 v{vAK1}, 16, v{vAK0}")
    A("s_cmp_eq_u32 s12, s10")
    A("s_cbranch_scc1 L_vscales")
    A("L_kgo:")
    for hb in range(2):
        wait_landed()
        o = hb * 0x8000
        if hb == 0:
            for part in range(4):
                A(f"ds_read_b128 {r(vR+4*part,4)}, v{vACS} offset:{(part >> 1)*8192 + (part & 1)*1024}")
        A(f"ds_read_b128 {r(vX,4)}, v{vAK0} offset:{o}")
        A(f"ds_read_b128 {r(vX+8,4)}, v{vAK0} offset:{o+2048}")
        A(f"ds_read_u16_d16_hi v{vKZ}, v{vAKZ} offset:{hb*1024}")
        A(f"ds_read_b128 {r(vX+4,4)}, v{vAK1} offset:{o}")
        A(f"ds_read_b128 {r(vX+12,4)}, v{vAK1} offset:{o+2048}")
        A(f"ds_read_u16_d16_hi v{vKS}, v{vAKS} offset:{hb*1024}")
        if hb == 0:
            A("s_waitcnt lgkmcnt(8)")
            unpack(vC, vR, 8)
            A("s_waitcnt lgkmcnt(0)")
            set_done(1)
            unpack(vC + 16, vR + 8, 8)
        for part in range(2):
            if hb == 1:
                A(f"s_waitcnt lgkmcnt({3 if part == 0 else 0})")
                if part == 1:
                    set_done(2)
            for b in (vX + 4 * part, vX + 8 + 4 * part):
                for i in range(4):
                    A(f"v_cvt_f32_i32 v{b+i}, v{b+i}")
            for b in (vX + 4 * part, vX + 8 + 4 * part):
                for i in (0, 2):
                    A(f"v_pk_add_f32 {r(b+i,2)}, {r(b+i,2)}, {r(vKZ,2)} op_sel_hi:[1,0] neg_lo:[0,1] neg_hi:[0,1]")
            rope(4 * part, 4 * part + 4, vA)
        A(f"v_mul_f32 v{vU}, s81, v{vKS}")
        A("s_nop 0")
        A(f"v_mfma_f32_16x16x32_bf16 {r(vD,4)}, {r(vA,4)}, {r(vQ+8*hb,4)}, 0")
        A(f"v_mfma_f32_16x16x32_bf16 {r(vD,4)}, {r(vA+4,4)}, {r(vQ+8*hb+4,4)}, {r(vD,4)}")
        if hb:
            A(f"v_add_u32 v{vAKZ}, s9, v{vAKZ}")
            A(f"v_add_u32 v{vAKS}, s9, v{vAKS}")
            A(f"s_xor_b32 s9, s9, {8 ^ 120}")
            A("s_sub_u32 s8, 0xc000, s8")
            A("s_cmp_lt_u32 s12, 48")
            A("s_nop 2")
        else:
            A("s_nop 7")
        A(f"v_add_f32_dpp v{vS}, v{vD+1}, v{vD} row_ror:8 row_mask:0xf bank_mask:0x3")
        A(f"v_add_f32_dpp v{vS}, v{vD+2}, v{vD+3} row_ror:8 row_mask:0xf bank_mask:0xc")
        A(f"v_mul_f32 v{vS}, v{vS}, v{vU}")
        A(f"ds_write_b32 v{vASw}, v{vS} offset:{hb*16384}")
        A(f"v_max_f32 v{vMB if hb else vM}, v{vMB if hb else vM}, v{vS}")
    A(f"v_add_u32 v{vASw}, 1024, v{vASw}")
    A("s_cbranch_scc1 L_kunit")
    A("s_mov_b32 s12, 48")
    A(f"v_max_f32_dpp v{vM}, v{vM}, v{vM} row_ror:8 row_mask:0xf bank_mask:0xf")
    A(f"v_max_f32_dpp v{vMB}, v{vMB}, v{vMB} row_ror:8 row_mask:0xf bank_mask:0xf")
    A(f"v_mov_b32 v{vU}, v{vM}")
    A(f"v_mov_b32 v{vS}, v{vMB}")
    A(f"v_lshlrev_b32 v{vOML}, 4, v3")
    A(f"v_add_u32 v5, {LDS_MX}, v{vOML}")
    A(f"v_permlane16_swap_b32 v{vM}, v{vU}")
    A(f"v_permlane16_swap_b32 v{vMB}, v{vS}")
    A(f"v_max_f32 v{vM}, v{vM}, v{vU}")
    A(f"v_max_f32 v{vMB}, v{vMB}, v{vS}")
    A(f"v_mov_b32 v{vU}, v{vM}")
    A(f"v_mov_b32 v{vS}, v{vMB}")
    A("s_lshl_b32 s7, s3, 2")
    A(f"v_add_u32 v{vKZ}, s7, v5")
    A(f"v_permlane32_swap_b32 v{vM}, v{vU}")
    A(f"v_permlane32_swap_b32 v{vMB}, v{vS}")
    A(f"v_max_f32 v{vM}, v{vM}, v{vU}")
    A(f"v_max_f32 v{vMB}, v{vMB}, v{vS}")
    A(f"ds_write_b32 v{vKZ}, v{vM}")
    A(f"ds_write_b32 v{vKZ}, v{vMB} offset:128")
    A(f"v_lshlrev_b32 v{vBV}, 4, v4")
    A(f"v_xor_b32 v{vBV}, v{vBV}, v{vOWS}")
    A("s_lshl_b32 s7, s3, 10")
    A(f"v_add_u32 v{vBV}, s7, v{vBV}")
    A(f"v_add_u32 v{vASr}, {LDS_S}, v{vOWS}")
    A(f"v_lshlrev_b32 v{vAVS}, 4, v2")
    A(f"v_add_u32 v{vAVS}, {LDS_SC + 4096}, v{vAVS}")
    A(f"v_add_u32 v{vOML}, {WS_ML}, v{vOML}")
    A(f"v_add_u32 v{vOWS}, s7, v{vOWS}              ; w*1024 + lane*16")
    A(f"v_bfe_u32 v{vOOUT}, v1, 3, 2")
    A(f"v_lshl_add_u32 v{vOOUT}, v{vOOUT}, 1, v4")
    A(f"v_lshlrev_b32 v{vOOUT}, 3, v{vOOUT}")
    A(f"v_lshl_add_u32 v{vOOUT}, v3, 8, v{vOOUT}")
    A("s_lshl_b32 s7, s3, 6")
    A(f"v_add_u32 v{vOOUT}, s7, v{vOOUT}")
    mksrd(SWS, 42, 0 if nostore else 0x220000)
    mksrd(SOUT, 38, 131072)
    A("s_lshl_b32 s10, s5, 4")
    A("s_or_b32 s10, s10, s4")
    A("s_lshl_b32 s10, s10, 12")
    A("s_add_u32 s15, s10, 0x8000")
    A(f"s_add_u32 s{sEP}, s{sEP}, 0x9e3779b9")
    for i in range(4):
        A(f"s_bfe_u32 s{90+i}, s{sEP}, {hex((8 << 16) | (8 * i))}")
    A("s_mov_b32 s64, 0xffffff00")
    A("s_mov_b32 s8, 0")
    wg_sync(2)
    A(f"ds_read_b128 {r(vD,4)}, v5")
    A(f"ds_read_b128 {r(vA,4)}, v5 offset:128")
    A("s_waitcnt lgkmcnt(0)")
    A(f"v_max3_f32 v{vM}, v{vD}, v{vD+1}, v{vD+2}")
    A(f"v_max3_f32 v{vMB2}, v{vA}, v{vA+1}, v{vA+2}")
    A(f"v_max_f32 v{vM}, v{vM}, v{vD+3}")
    A(f"v_max_f32 v{vMB2}, v{vMB2}, v{vA+3}")
    def vcvt(ts):
        for t in ts:
            for j in range(4):
                A(f"v_cvt_f32_i32 v{vX+4*t+j}, v{vX+4*t+j}")
    def vpack(pr):
        for j in range(4):
            A(f"v_cvt_pk_bf16_f32 v{vA+2*j+pr}, v{vX+8*pr+j}, v{vX+8*pr+4+j}")
    def vstage(h):
        wait_landed()
        if h == 0:
            A(f"ds_read_b32 v{vU}, v{vF} offset:36")
        for t in range(4):
            A(f"ds_read_b128 {r(vX+4*t,4)}, v{vAV} offset:{(4*h+t)*4096}")
        A(f"v_mfma_f32_16x16x16_bf16 {r(vCOR,4)}, {r(vVZ+2*h,2)}, {r(vPP+2*h,2)}, {r(vCOR,4)}")
        A("s_waitcnt lgkmcnt(2)")
        vcvt([0, 1])
        vpack(0)
        A("s_waitcnt lgkmcnt(0)")
        set_done(1)
        if h == 0:
            A(f"v_readfirstlane_b32 s9, v{vU}")
        vcvt([2, 3])
        vpack(1)
        for j in range(4):
            A(f"v_mfma_f32_16x16x16_bf16 {r(vACC+4*j,4)}, {r(vA+2*j,2)}, {r(vPP+2*h,2)}, {r(vACC+4*j,4)}")
    sl = [0]
    def store_slot(vo, vml, soff):
        k = sl[0]; sl[0] += 1
        A(f"buffer_store_dwordx4 {r(vo,4)}, v{vOWS}, {srd(SWS)}, {soff} offen sc1")
        A("s_cmp_lg_u32 s3, 0")
        A(f"s_cbranch_scc1 L_noml{k}")
        A(f"s_lshr_b32 s6, {soff}, 5")
        A("s_mov_b64 exec, 0xff")
        A(f"buffer_store_dwordx4 {r(vml,4)}, v{vOML}, {srd(SWS)}, s6 offen sc1")
        A("s_mov_b64 exec, -1")
        A(f"L_noml{k}:")
    def loads_o():
        for k in range(7):
            A(f"s_xor_b32 s6, s15, {(k+1) << 12}")
            A(f"buffer_load_dwordx4 {r(vO+4*k,4)}, v{vOWS}, {srd(SWS)}, s6 offen sc1")
    def loads_ml():
        A("s_lshr_b32 s7, s15, 5")
        for k in range(7):
            A(f"s_xor_b32 s6, s7, {(k+1) << 7}")
            A(f"buffer_load_dwordx3 {r(vML+4*k,3)}, v{vOML}, {srd(SWS)}, s6 offen sc1")
    def check_ml(dst):
        for k in range(7):
            A(f"v_xor_b32 v{vML+4*k+2}, s{sEP}, v{vML+4*k+2}")
        A(f"v_or3_b32 v{dst}, v{vML+2}, v{vML+6}, v{vML+10}")
        A(f"v_or3_b32 v{dst}, v{dst}, v{vML+14}, v{vML+18}")
        A(f"v_or3_b32 v{dst}, v{dst}, v{vML+22}, v{vML+26}")
    A("L_vhead:")
    for i in range(20):
        A(f"v_mov_b32 v{vACC+i}, 0")
    A(f"v_mov_b32 v{vL2}, 0")
    A(f"v_mov_b32 v{vL2+1}, 0")
    A("L_vblk:")
    A(f"ds_read_b128 {r(vP,4)}, v{vASr}")
    A(f"ds_read_b128 {r(vP+4,4)}, v{vASr} offset:1024")
    A(f"ds_read_b128 {r(vVS,4)}, v{vAVS}")
    A(f"ds_read_b128 {r(vVZ,4)}, v{vAVS} offset:2048")
    A(f"v_add_u32 v{vASr}, 2048, v{vASr}")
    A(f"v_add_u32 v{vAVS}, 128, v{vAVS}")
    A(f"v_add_u32 v{vAV}, s8, v{vBV}")
    A("s_waitcnt lgkmcnt(2)")
    for i in range(0, 8, 2):
        A(f"v_pk_add_f32 {r(vP+i,2)}, {r(vP+i,2)}, {r(vM,2)} op_sel_hi:[1,0] neg_lo:[0,1] neg_hi:[0,1]")
    for i in range(8):
        A(f"v_exp_f32 v{vP+i}, v{vP+i}")
    A("s_waitcnt lgkmcnt(0)")
    unpack(vVU, vVS, 4)
    for i in range(0, 8, 2):
        A(f"v_pk_mul_f32 {r(vVU+i,2)}, {r(vVU+i,2)}, {r(vP+i,2)}")
    for i in range(4):
        A(f"v_cvt_pk_bf16_f32 v{vPP+i}, v{vVU+2*i}, v{vVU+2*i+1}")
    for i in range(0, 8, 2):
        A(f"v_pk_add_f32 {r(vL2,2)}, {r(vL2,2)}, {r(vP+i,2)}")
    vstage(0)
    A(f"s_cmp_ge_u32 s12, {48 + 2 * PA + 1}")
    A("s_cbranch_scc1 L_late")
    A("L_vmid:")
    vstage(1)
    A("s_add_u32 s8, s8, 0x8000")
    A(f"s_cmp_eq_u32 s8, {RING}")
    A("s_cselect_b32 s8, 0, s8")
    A("s_and_b32 s6, s12, 15")
    A("s_cbranch_scc1 L_vblk")
    A(f"v_add_f32 v{vL}, v{vL2}, v{vL2+1}")
    A("s_mov_b32 s11, 0")
    A(f"v_mov_b32 v{vL2}, s{sEP}")
    A(f"v_add_f32_dpp v{vL}, v{vL}, v{vL} row_ror:8 row_mask:0xf bank_mask:0xf")
    A(f"v_mov_b32 v{vU}, v{vL}")
    A(f"v_mov_b32 v{vL2+1}, s{sEP}")
    A("s_nop 0")
    A(f"v_permlane16_swap_b32 v{vL}, v{vU}")
    A(f"v_add_f32 v{vL}, v{vL}, v{vU}")
    A(f"v_mov_b32 v{vU}, v{vL}")
    for i in range(0, 16, 2):
        A(f"v_pk_add_f32 {r(vACC+i,2)}, {r(vACC+i,2)}, {r(vCOR,2)} op_sel_hi:[1,0] neg_lo:[0,1] neg_hi:[0,1]")
    A(f"v_permlane32_swap_b32 v{vL}, v{vU}")
    A(f"v_add_f32 v{vL}, v{vL}, v{vU}")
    for j in range(4):
        A(f"v_permlane32_swap_b32 v{vACC+4*j}, v{vACC+4*j+1}")
        A(f"v_permlane32_swap_b32 v{vACC+4*j+2}, v{vACC+4*j+3}")
    A("s_cmp_eq_u32 s12, 80")
    for j in range(4):
        A(f"v_add_f32_dpp v{vD+j}, v{vACC+4*j+1}, v{vACC+4*j} row_ror:8 row_mask:0xf bank_mask:0x3")
        A(f"v_add_f32_dpp v{vD+j}, v{vACC+4*j+2}, v{vACC+4*j+3} row_ror:8 row_mask:0xf bank_mask:0xc")
    for j in range(4):
        A(f"v_and_b32 v{vD+j}, s64, v{vD+j}")
    A("s_cbranch_scc1 L_last")
    for j in range(4):
        A(f"v_or_b32 v{vDA+j}, s{90+j}, v{vD+j}")
        A(f"v_mov_b32 v{vMA+j}, v{vM+j}")
    A(f"v_mov_b32 v{vM}, v{vMB2}")
    A("s_branch L_vhead")
    A("L_vscales:")
    scales((26, 28), LDS_SC + 4096)
    A("s_branch L_kgo")
    A("L_late:")
    A(f"s_cmp_lg_u32 s12, {48 + 2 * PA + 1}")
    A("s_cbranch_scc1 L_nopa")
    store_slot(vDA, vMA, "s10")
    A("L_nopa:")
    if mpre:
        A("s_lshl_b32 s6, s9, 8")
        A("s_or_b32 s6, s6, s12")
        A(f"s_cmp_lg_u32 s6, {0x700 + 79}")
        A("s_cbranch_scc1 L_vmid")
        loads_ml()
        loads_o()
    A("s_branch L_vmid")
    A("L_last:")
    A("s_cmp_eq_u32 s9, 7")
    A("s_cbranch_scc1 L_mergeb")
    for j in range(4):
        A(f"v_or_b32 v{vD+j}, s{90+j}, v{vD+j}")
    store_slot(vD, vM, "s15")
    A("s_cmp_lg_u32 s9, 0")
    A("s_cbranch_scc1 " + ("L_stamp" if stamps else "L_end"))
    A("s_mov_b32 s15, s10")
    A("L_waita:")
    loads_ml()
    guard()
    A("s_waitcnt vmcnt(0)")
    check_ml(vT)
    A(f"v_cmp_ne_u32 vcc, 0, v{vT}")
    if not nostore:
        A("s_cbranch_vccnz L_waita")
    for j in range(4):
        A(f"v_and_b32 v{vD+j}, s64, v{vDA+j}")
    A(f"v_mov_b32 v{vM}, v{vMA}")
    A(f"v_mov_b32 v{vL}, v{vMA+1}")
    A("s_branch L_poll")
    A("L_mergeb:")
    A("s_add_u32 s14, s14, 2048")
    if mpre:
        A("s_branch L_check")
    A("L_poll:")
    loads_ml()
    loads_o()
    A("L_check:")
    A("s_add_u32 s11, s11, 1")
    guard()
    A("s_waitcnt vmcnt(0)")
    check_ml(vT)
    for k in range(7):
        for j in range(4):
            A(f"v_xor_b32 v{vO+4*k+j}, s{90+j}, v{vO+4*k+j}")
    A(f"v_or_b32 v{vU}, v{vO}, v{vO+1}")
    A(f"v_or_b32 v{vS}, v{vO+2}, v{vO+3}")
    for i in range(4, 28, 2):
        t = vU if (i & 2) == 0 else vS
        A(f"v_or3_b32 v{t}, v{t}, v{vO+i}, v{vO+i+1}")
    A(f"v_or_b32 v{vU}, v{vU}, v{vS}")
    A(f"v_and_b32 v{vU}, 0xff, v{vU}")
    A(f"v_or_b32 v{vT}, v{vT}, v{vU}")
    A(f"v_cmp_ne_u32 vcc, 0, v{vT}")
    if not nostore:
        A("s_cbranch_vccnz L_poll")
    ms = [vM] + [vML + 4 * k for k in range(7)]
    os_ = [vD] + [vO + 4 * k for k in range(7)]
    A(f"v_max3_f32 v{vT}, v{ms[0]}, v{ms[1]}, v{ms[2]}")
    A(f"v_max3_f32 v{vU}, v{ms[3]}, v{ms[4]}, v{ms[5]}")
    A(f"v_max3_f32 v{vT}, v{vT}, v{ms[6]}, v{ms[7]}")
    A(f"v_max_f32 v{vT}, v{vT}, v{vU}")
    for k in range(8):
        A(f"v_sub_f32 v{ms[k]}, v{ms[k]}, v{vT}")
    for k in range(8):
        A(f"v_exp_f32 v{ms[k]}, v{ms[k]}")
    for k in range(8):
        A(f"v_mul_f32 v{ms[k]+1}, v{ms[k]+1}, v{ms[k]}")
    for st in (1, 2, 4):
        for k in range(0, 8, 2 * st):
            A(f"v_add_f32 v{ms[k]+1}, v{ms[k]+1}, v{ms[k+st]+1}")
    A(f"v_rcp_f32 v2, v{ms[0]+1}")
    for k in range(8):
        for i in (0, 2):
            A(f"v_pk_mul_f32 {r(os_[k]+i,2)}, {r(os_[k]+i,2)}, {r(ms[k],2)} op_sel_hi:[1,0]")
    for st in (1, 2, 4):
        for k in range(0, 8, 2 * st):
            for i in (0, 2):
                A(f"v_pk_add_f32 {r(os_[k]+i,2)}, {r(os_[k]+i,2)}, {r(os_[k+st]+i,2)}")
    for i in (0, 2):
        A(f"v_pk_mul_f32 {r(vD+i,2)}, {r(vD+i,2)}, v[2:3] op_sel_hi:[1,0]")
    A(f"v_cvt_pk_bf16_f32 v4, v{vD}, v{vD+1}")
    A(f"v_cvt_pk_bf16_f32 v5, v{vD+2}, v{vD+3}")
    A(f"buffer_store_dwordx2 v[4:5], v{vOOUT}, {srd(SOUT)}, s14 offen")
    A("s_lshl_b32 s6, s3, 3")
    A("s_or_b32 s6, s6, s9")
    A("s_cmp_lg_u32 s6, 7")
    A("s_cbranch_scc1 " + ("L_stamp" if stamps else "L_end"))
    A(f"v_mov_b32 v{vT}, 0")
    A("s_mov_b64 exec, 1")
    A(f"buffer_store_dword v{vL2}, v{vT}, {srd(SWS)}, s94 offen")
    if stamps:
        A("L_stamp:")
        A("s_memrealtime s[86:87]")
        A("s_getreg_b32 s88, hwreg(HW_REG_XCC_ID)")
        A("s_lshl_b32 s7, s9, 8")
        A("s_or_b32 s88, s88, s7")
        A("s_waitcnt lgkmcnt(0)")
        A("s_mov_b64 exec, 1")
        A("v_mov_b32 v8, s84")
        A("v_mov_b32 v9, s85")
        A("v_mov_b32 v10, s86")
        A("v_mov_b32 v11, s87")
        A("v_mov_b32 v12, s88")
        A("v_mov_b32 v13, s11")
        A("s_lshl_b32 s89, s2, 2")
        A("s_or_b32 s89, s89, s3")
        A("s_lshl_b32 s89, s89, 5")
        A("s_add_u32 s89, s89, 0x400000")
        A("v_mov_b32 v2, 0")
        A(f"s_mov_b32 s{SWS+2}, 0x800000")
        A(f"buffer_store_dwordx4 v[8:11], v2, {srd(SWS)}, s89 offen")
        A(f"buffer_store_dwordx2 v[12:13], v2, {srd(SWS)}, s89 offen offset:16")
    A("L_end:")
    A("s_endpgm")
    A('.section .rodata,"a"')
    A(".p2align 6")
    A(f".amdhsa_kernel {KNAME}")
    A(f"  .amdhsa_next_free_vgpr {NV}")
    A("  .amdhsa_next_free_sgpr 96")
    A(f"  .amdhsa_accum_offset {NV}")
    A("  .amdhsa_group_segment_fixed_size 0")
    A("  .amdhsa_kernarg_size 112")
    A("  .amdhsa_user_sgpr_count 2")
    A("  .amdhsa_user_sgpr_kernarg_segment_ptr 1")
    A("  .amdhsa_system_sgpr_workgroup_id_x 1")
    A("  .amdhsa_float_denorm_mode_32 3")
    A(".end_amdhsa_kernel")
    return "\n".join(L) + "\n"

if __name__ == "__main__":
    kw = eval("dict(" + (sys.argv[2] if len(sys.argv) > 2 else "") + ")")
    open(sys.argv[1], "w").write(gen(**kw))
```

```python
import sys, math, struct
KNAME = "standalone__kv_cache_quant_pre_rope_vs_post_rope__sampling_kernel"
HEADER = open("standalone__kv_cache_quant_pre_rope_vs_post_rope__sampling.s.ref").read().split("; Override launch")[0]

def f2u(x):
    return struct.unpack("<I", struct.pack("<f", x))[0]

def gen(DK=32, DV=24, nt="nt", TS=75, PA=14, VSU=10, stamps=False, nocs=False, touch=1, mpre=True, spin=1 << 22,
        l2pf=1, nostore=False, sdiag=False, FB=10, RA=4, lastbar=True, latebar=True):
    assert 17 <= DK <= 32 and 17 <= DV <= 32 and TS <= 79 and 8 <= FB and FB + 1 <= PA <= 15
    L = []
    def A(s=""):
        L.append(s if (s.endswith(":") or s.startswith(".") or s.startswith(";")) else "    " + s)
    RING = 0x18000
    LDS_S = RING
    LDS_SC = LDS_S + 0x8000
    LDS_Q = LDS_SC + 0x2000
    LDS_MX = LDS_Q + 4096
    LDS_LX = LDS_MX + 256
    LDS_F = LDS_LX + 128
    lds = LDS_F + 64
    WS_ML = 0x200000
    WS_EP = 0x210000
    L.append(HEADER.rstrip())
    A(f"; @launch grid=(256,1,1) block=(320,1,1) lds={lds}")
    A('.amdgcn_target "amdgcn-amd-amdhsa--gfx950"')
    A(".text")
    A(f".globl {KNAME}")
    A(".p2align 8")
    A(f".type {KNAME},@function")
    A(f"{KNAME}:")
    A("s_cmp_ge_u32 s2, 256")
    A("s_cbranch_scc1 L_end")
    if stamps:
        A("s_memrealtime s[84:85]")
    A("s_load_dwordx16 s[16:31], s[0:1], 0")
    A("s_load_dwordx8 s[32:39], s[0:1], 64")
    A("s_load_dwordx4 s[40:43], s[0:1], 96")
    A("v_lshrrev_b32 v2, 6, v0")
    A("v_and_b32 v1, 63, v0")
    A("v_readfirstlane_b32 s3, v2")
    A("s_and_b32 s4, s2, 7                        ; member m")
    A("s_lshr_b32 s5, s2, 3")
    A("v_lshrrev_b32 v2, 3, v1                    ; lane>>3")
    A("v_and_b32 v3, 7, v1                        ; lane&7")
    A("v_lshrrev_b32 v4, 5, v1                    ; lane>>5")
    A(f"v_mov_b32 v23, {LDS_F}")
    A("s_mov_b32 s83, 0")
    A("s_cmp_lg_u32 s3, 0")
    A("s_cbranch_scc1 L_consumer")
    A("s_setprio 3")
    A("v_mov_b32 v6, 0")
    A("ds_write_b32 v23, v6 offset:32")
    A("v_xor_b32 v5, v3, v4")
    A("v_lshlrev_b32 v5, 4, v5")
    A("v_lshl_add_u32 v10, v2, 12, v5")
    A("v_lshlrev_b32 v5, 2, v4")
    A("v_xor_b32 v5, v5, v3")
    A("v_lshlrev_b32 v5, 4, v5")
    A("v_lshl_add_u32 v11, v2, 11, v5")
    A("s_lshl_b32 s7, s5, 22")
    A("s_lshl_b32 s6, s4, 15")
    A("s_add_u32 s7, s7, s6                       ; g*4M + m*32K")
    A("s_sub_u32 s10, 0x400000, s6")
    A("s_mov_b32 s11, 0x00020000")
    A("s_lshr_b32 s6, s6, 1")
    A(f"s_sub_u32 s14, {0 if nocs else 0x100000}, " + ("0" if nocs else "s6"))
    A("s_mov_b32 s15, 0x00020000")
    A("s_mov_b32 s62, s14")
    A("s_mov_b32 s63, 0x00020000")
    A("s_mov_b32 s44, 0")
    A("s_mov_b32 s45, 2048")
    A("s_mov_b32 s46, 0")
    A("s_mov_b32 s47, 0")
    A("s_mov_b32 s48, 0")
    A("v_mov_b32 v12, 0")
    A("v_mov_b32 v13, 0")
    A("v_mov_b32 v14, 0")
    A("v_mov_b32 v15, 0")
    A("s_waitcnt lgkmcnt(0)")
    if sdiag:
        A("s_memrealtime s[64:65]")
    if not latebar:
        A("s_barrier")
    if sdiag:
        A("s_memrealtime s[66:67]")
    A("s_add_u32 s8, s18, s7")
    A("s_addc_u32 s9, s19, 0")
    A("s_add_u32 s12, s34, s6")
    A("s_addc_u32 s13, s35, 0")
    A("s_add_u32 s60, s36, s6")
    A("s_addc_u32 s61, s37, 0")
    cnt = [0]
    def stamp():
        if stamps:
            A("s_memrealtime s[50:51]")
            A("s_lshl_b64 exec, 1, s47")
            A("s_cmp_lt_u32 s47, 64")
            A("s_waitcnt lgkmcnt(0)")
            A(f"s_cbranch_scc0 L_st{cnt[0]}")
            A("v_mov_b32 v8, s50")
            A(f"s_branch L_su{cnt[0]}")
            A(f"L_st{cnt[0]}:")
            A("v_mov_b32 v9, s50")
            A(f"L_su{cnt[0]}:")
            A("s_mov_b64 exec, -1")
            cnt[0] += 1
    def publish():
        stamp()
        A("v_mov_b32 v6, s47")
        A("ds_write_b32 v23, v6 offset:32")
    stalls = []
    def body(name, D, kind, soff):
        A(f"L_{name}:")
        A("v_min3_u32 v7, v12, v13, v14")
        A("v_min_u32 v7, v7, v15")
        A("s_sub_u32 s52, s46, 5")
        A("v_readfirstlane_b32 s53, v7")
        A("s_mov_b32 m0, s48")
        A("s_cmp_lt_i32 s53, s52")
        A(f"s_cbranch_scc1 L_{name}_full")
        stalls.append(name)
        for p in range(16):
            if p:
                if kind == "cs" and p == 8:
                    A(f"s_addk_i32 m0, {hex(8192 - 7 * 896)}")
                else:
                    A("s_addk_i32 m0, 0x380")
            A(f"s_waitcnt vmcnt({D-1})")
            if p == D - 17:
                publish()
            if p == 13:
                A("ds_read_b128 v[12:15], v23")
            if kind == "cs":
                A(f"buffer_load_dwordx4 v11, {'s[12:15]' if p < 8 else 's[60:63]'}, {soff} offen offset:{128*(p&7)} lds")
            else:
                A(f"buffer_load_dwordx4 v10, s[8:11], {soff} offen offset:{128*p} {nt} lds")
        if sdiag and name != "v":
            k = {"ka": 0, "cs": 1, "kb": 2}[name]
            A(f"s_cmp_lg_u32 s46, {k}")
            A(f"s_cbranch_scc1 L_sd{name}")
            A(f"s_memrealtime s[{68+2*k}:{69+2*k}]")
            A(f"L_sd{name}:")
        A("s_mov_b32 s47, s46")
        A("s_add_u32 s46, s46, 1")
        A("s_add_u32 s48, s48, 0x4000")
        if name in ("kb", "v"):
            A(f"s_cmp_eq_u32 s48, {RING}")
            A("s_cselect_b32 s48, 0, s48")
    body("ka", DK, "k", "s44")
    if latebar:
        A("s_cmp_lg_u32 s46, 1")
        A("s_cbranch_scc1 L_nobar")
        A("s_barrier")
        A("L_nobar:")
    A("s_lshr_b32 s49, s44, 1")
    body("cs", DK, "cs", "s49")
    A("s_add_u32 s54, s44, 0x200000")
    body("kb", DK, "k", "s54")
    A("s_add_u32 s44, s44, s45")
    A(f"s_xor_b32 s45, s45, {2048 ^ (0x40000 - 2048)}")
    A("s_cmp_lt_u32 s46, 48")
    A("s_cbranch_scc1 L_ka")
    A("s_add_u32 s8, s24, s7")
    A("s_addc_u32 s9, s25, 0")
    A("s_mov_b32 s44, 0")
    A(f"s_mov_b32 s55, {TS}")
    body("v", DV, "k", "s44")
    A("s_add_u32 s44, s44, s45")
    A(f"s_xor_b32 s45, s45, {2048 ^ (0x40000 - 2048)}")
    A("s_cmp_lg_u32 s46, s55")
    A("s_cbranch_scc1 L_v")
    A("s_cmp_eq_u32 s46, 80")
    A("s_cbranch_scc1 L_ldone")
    A("s_mov_b32 s57, 1")
    A("s_lshl_b32 s6, s5, 2")
    A("s_atomic_add s57, s[40:41], s6 glc")
    A("s_mov_b32 s55, 80")
    A("s_branch L_v")
    A("L_ldone:")
    A("s_waitcnt lgkmcnt(0)")
    A("v_mov_b32 v16, s57")
    A("ds_write_b32 v23, v16 offset:36")
    A("s_waitcnt vmcnt(16)")
    publish()
    A("s_mov_b32 s47, 80")
    A("s_waitcnt vmcnt(0)")
    if lastbar:
        stamp()
        A("s_barrier")
    else:
        publish()
    if stamps:
        A("s_mov_b32 s60, s42")
        A("s_mov_b32 s61, s43")
        A("s_mov_b32 s62, 0x800000")
        A("s_mov_b32 s63, 0x00020000")
        A("s_lshl_b32 s55, s2, 10")
        A("s_add_u32 s55, s55, 0x500000")
        A("v_lshlrev_b32 v2, 2, v1")
        A("buffer_store_dword v8, v2, s[60:63], s55 offen")
        A("buffer_store_dword v9, v2, s[60:63], s55 offen offset:256")
        A("v_mov_b32 v10, s83")
        if sdiag:
            for k in range(5):
                A(f"v_writelane_b32 v10, s{64+2*k}, {1+k}")
        A("buffer_store_dword v10, v2, s[60:63], s55 offen offset:512")
    A("s_endpgm")
    for name in stalls:
        A(f"L_{name}_full:")
        A("ds_read_b128 v[12:15], v23")
        A("s_add_u32 s83, s83, 1")
        A(f"s_cmp_gt_u32 s83, {spin}")
        A("s_cbranch_scc1 L_end")
        A("s_waitcnt lgkmcnt(0)")
        A(f"s_branch L_{name}")
    vBK, vAK0, vAK1, vBCS, vACS, vASw, vAKZ, vAKS, vOWS, vOML, vOOUT, vAD = range(6, 18)
    vBV, vAV, vASr, vAVS = vBK, vAK0, vAK1, vAKS
    vM, vL, vL2, vT, vF = 18, 19, 20, 22, 23
    vMB = 21
    vKZ, vKS, vU, vS = 24, 25, 26, 27
    vD = 28; vQ = 32; vA = 48; vX = 56
    vR = 72; vC = 88; vW = 120
    vP = 72; vPP = 80; vVS = 84; vVZ = 32; vVU = 36; vMB2 = 44; vN = 45
    vO = 88; vML = vO + 28
    vACC = 136; vCOR = 152; vDA = 156; vMA = 160
    NV = 164
    SWS, SOUT, ST = 68, 72, 76
    sEP = 82
    def r(a, n):
        return f"v[{a}:{a+n-1}]"
    def srd(s):
        return f"s[{s}:{s+3}]"
    def mksrd(s, ptr, size):
        A(f"s_mov_b32 s{s}, s{ptr}")
        A(f"s_mov_b32 s{s+1}, s{ptr+1}")
        A(f"s_mov_b32 s{s+2}, {size}")
        A(f"s_mov_b32 s{s+3}, 0x00020000")
    def unpack(dst, src, n):
        for i in range(n):
            A(f"v_lshlrev_b32 v{dst+2*i}, 16, v{src+i}")
            A(f"v_and_b32 v{dst+2*i+1}, s80, v{src+i}")
    def rope(i0, i1, dst):
        Clo, Chi, Slo, Shi = vC, vC + 8, vC + 16, vC + 24
        for i in range(i0, i1, 2):
            A(f"v_pk_mul_f32 {r(vW+i,2)}, {r(vX+i,2)}, {r(Clo+i,2)}")
            A(f"v_pk_mul_f32 {r(vW+8+i,2)}, {r(vX+8+i,2)}, {r(Chi+i,2)}")
        for i in range(i0, i1, 2):
            A(f"v_pk_fma_f32 {r(vW+i,2)}, {r(vX+8+i,2)}, {r(Slo+i,2)}, {r(vW+i,2)} neg_lo:[1,0,0] neg_hi:[1,0,0]")
            A(f"v_pk_fma_f32 {r(vW+8+i,2)}, {r(vX+i,2)}, {r(Shi+i,2)}, {r(vW+8+i,2)}")
        for i in range(i0, i1, 2):
            A(f"v_cvt_pk_bf16_f32 v{dst+i//2}, v{vW+i}, v{vW+i+1}")
            A(f"v_cvt_pk_bf16_f32 v{dst+4+i//2}, v{vW+8+i}, v{vW+8+i+1}")
    wl = [0]
    def guard():
        A("s_add_u32 s83, s83, 1")
        A(f"s_cmp_gt_u32 s83, {spin}")
        A("s_cbranch_scc1 L_end")
    def wait_landed():
        k = wl[0]; wl[0] += 1
        A("s_cmp_gt_u32 s13, s12")
        A(f"s_cbranch_scc1 L_wl{k}_ok")
        A(f"L_wl{k}:")
        A(f"ds_read_b32 v{vT}, v{vF} offset:32")
        guard()
        A("s_waitcnt lgkmcnt(0)")
        A(f"v_readfirstlane_b32 s13, v{vT}")
        A("s_cmp_gt_u32 s13, s12")
        A(f"s_cbranch_scc0 L_wl{k}")
        A(f"L_wl{k}_ok:")
    def set_done(inc):
        A("s_add_u32 s6, s12, 1")
        A(f"v_mov_b32 v{vT}, s6")
        A(f"ds_write_b32 v{vAD}, v{vT}")
        A(f"s_add_u32 s12, s12, {inc}")
    def wg_sync(val):
        k = wl[0]; wl[0] += 1
        A(f"v_mov_b32 v{vT}, {val}")
        A("s_waitcnt vmcnt(0) lgkmcnt(0)")
        A(f"ds_write_b32 v{vAD}, v{vT} offset:16")
        A(f"L_ws{k}:")
        A(f"ds_read_b128 {r(vD,4)}, v{vF} offset:16")
        guard()
        A("s_waitcnt lgkmcnt(0)")
        A(f"v_min3_u32 v{vT}, v{vD}, v{vD+1}, v{vD+2}")
        A(f"v_min_u32 v{vT}, v{vT}, v{vD+3}")
        A("s_nop 0")
        A(f"v_readfirstlane_b32 s6, v{vT}")
        A(f"s_cmp_ge_u32 s6, {val}")
        A(f"s_cbranch_scc0 L_ws{k}")
    def scales(ptrs, base):
        A(f"v_lshlrev_b32 v{vT}, 4, v3")
        A(f"v_lshl_add_u32 v{vT}, v2, 10, v{vT}")
        A("s_lshl_b32 s6, s5, 14")
        A("s_lshl_b32 s7, s4, 7")
        A("s_add_u32 s6, s6, s7")
        A("s_add_u32 s7, s6, 8192")
        A(f"s_mov_b32 s{ST+2}, 0x80000")
        for k, ptr in enumerate(ptrs):
            A(f"s_mov_b32 m0, {base + k*2048}")
            A(f"s_mov_b32 s{ST}, s{ptr}")
            A(f"s_mov_b32 s{ST+1}, s{ptr+1}")
            A(f"buffer_load_dwordx4 v{vT}, {srd(ST)}, s6 offen lds")
            A("s_addk_i32 m0, 0x400")
            A("s_nop 0")
            A(f"buffer_load_dwordx4 v{vT}, {srd(ST)}, s7 offen lds")

    A("L_consumer:")
    A("s_sub_u32 s3, s3, 1                        ; w")
    A("s_mov_b32 s80, 0xffff0000")
    A(f"s_mov_b32 s81, {hex(f2u(128 ** -0.5 * math.log2(math.e)))}")
    A("s_lshl_b32 s14, s5, 12")
    A(f"v_lshlrev_b32 v{vOWS}, 4, v1")
    A(f"s_mov_b32 s{ST+3}, 0x00020000")
    A("s_lshl_b32 s94, s5, 7")
    A(f"s_add_u32 s94, s94, {WS_EP}")
    A("s_lshl_b32 s7, s3, 2")
    A(f"v_add_u32 v{vAD}, s7, v{vF}")
    A(f"v_mov_b32 v{vKZ}, 0")
    A(f"ds_write_b32 v{vAD}, v{vKZ}")
    A(f"ds_write_b32 v{vAD}, v{vKZ} offset:16")
    A("s_waitcnt lgkmcnt(0)")
    if latebar != 1:
        A("s_barrier")
    A(f"s_load_dword s{sEP}, s[42:43], s94")
    A("s_cmp_lg_u32 s3, 0")
    A("s_cbranch_scc1 L_notq")
    A(f"v_lshlrev_b32 v{vT}, 4, v3")
    A(f"v_lshl_add_u32 v{vT}, v2, 8, v{vT}          ; q*256 + e*16")
    A(f"s_mov_b32 s{ST}, s30")
    A(f"s_mov_b32 s{ST+1}, s31")
    A(f"s_mov_b32 s{ST+2}, 2048")
    A(f"buffer_load_dwordx4 {r(vR,4)}, v{vT}, {srd(ST)}, 0 offen")
    A(f"buffer_load_dwordx4 {r(vR+4,4)}, v{vT}, {srd(ST)}, 0 offen offset:128")
    A(f"s_mov_b32 s{ST}, s32")
    A(f"s_mov_b32 s{ST+1}, s33")
    A(f"buffer_load_dwordx4 {r(vR+8,4)}, v{vT}, {srd(ST)}, 0 offen")
    A(f"buffer_load_dwordx4 {r(vR+12,4)}, v{vT}, {srd(ST)}, 0 offen offset:128")
    A(f"s_mov_b32 s{ST}, s16")
    A(f"s_mov_b32 s{ST+1}, s17")
    A(f"s_mov_b32 s{ST+2}, 131072")
    for k in range(4):
        A(f"buffer_load_dwordx4 {r(vACC+4*k,4)}, v{vT}, {srd(ST)}, s14 offen offset:{(k >> 1)*2048 + (k & 1)*128}")
    A("s_branch L_roles")
    A("L_notq:")
    A("s_cmp_lg_u32 s3, 1")
    A("s_cbranch_scc1 L_notsc")
    scales((22, 20), LDS_SC)
    A("s_branch L_roles")
    A("L_notsc:")
    def l2pf_addr():
        A("s_lshr_b32 s6, s5, 2")
        A("s_lshl_b32 s6, s6, 3")
        A("s_add_u32 s6, s6, s4")
        A("s_lshl_b32 s6, s6, 14")
        A("s_and_b32 s7, s5, 3")
        A("s_lshl_b32 s7, s7, 12")
        A("s_add_u32 s6, s6, s7")
    def l2pf_vec(skip):
        A("s_cmp_lg_u32 s3, 2")
        A(f"s_cbranch_scc1 {skip}")
        l2pf_addr()
        A(f"v_lshlrev_b32 v{vT}, 7, v1")
        A(f"s_mov_b32 s{ST}, s34")
        A(f"s_mov_b32 s{ST+1}, s35")
        A(f"s_mov_b32 s{ST+2}, 0x100000")
        A("s_mov_b32 exec_hi, 0")
        A(f"buffer_load_dword v{vACC}, v{vT}, {srd(ST)}, s6 offen")
        A(f"s_mov_b32 s{ST}, s36")
        A(f"s_mov_b32 s{ST+1}, s37")
        A(f"buffer_load_dword v{vACC+1}, v{vT}, {srd(ST)}, s6 offen")
        A("s_mov_b64 exec, -1")
        A(f"{skip}:")
    if l2pf == 4:
        l2pf_vec("L_nopf")
    def touches():
        A("; first touch of pages that are needed later")
        A("s_lshl_b32 s6, s5, 22")
        A("s_add_u32 s7, s6, 0x200000")
        if touch == 1:
            A("s_load_dword s95, s[18:19], s7")
            A("s_load_dword s95, s[26:27], 0")
            A("s_load_dword s95, s[28:29], 0")
        A("s_load_dword s95, s[24:25], s6")
        A("s_load_dword s95, s[24:25], s7")
        A("s_load_dword s95, s[38:39], 0")
        A("s_load_dword s95, s[42:43], 0")
    if touch == 1:
        A("s_cmp_lg_u32 s3, 3")
        A("s_cbranch_scc1 L_roles")
        touches()
    A("L_roles:")
    if latebar == 1:
        A("s_barrier")
    A("v_bfe_u32 v5, v1, 1, 3")
    A(f"v_lshl_add_u32 v{vAKZ}, v5, 3, s3")
    A(f"v_lshlrev_b32 v{vAKZ}, 1, v{vAKZ}")
    A(f"v_add_u32 v{vAKZ}, {LDS_SC}, v{vAKZ}")
    A(f"v_lshl_add_u32 v{vAKS}, v2, 3, s3")
    A(f"v_lshlrev_b32 v{vAKS}, 1, v{vAKS}")
    A(f"v_add_u32 v{vAKS}, {LDS_SC + 2048}, v{vAKS}")
    A(f"v_lshrrev_b32 v{vT}, 4, v1")
    A(f"v_and_b32 v{vU}, 1, v1")
    A(f"v_lshl_add_u32 v{vT}, v{vT}, 1, v{vU}       ; e = 2g+a")
    A(f"v_and_b32 v{vU}, 4, v5")
    A(f"v_xor_b32 v{vU}, v{vU}, v{vT}")
    A(f"v_lshlrev_b32 v{vU}, 4, v{vU}")
    A(f"v_lshl_add_u32 v{vBCS}, v5, 7, v{vU}")
    A("s_lshl_b32 s7, s3, 11")
    A("s_add_u32 s7, s7, 0x4000")
    A(f"v_add_u32 v{vBCS}, s7, v{vBCS}")
    A("s_lshl_b32 s7, s3, 12")
    A(f"v_lshlrev_b32 v{vBK}, 10, v4               ; (g>>1)*1024")
    A(f"v_lshl_add_u32 v{vBK}, v5, 7, v{vBK}        ; + rho*128")
    A(f"v_and_b32 v{vT}, 3, v{vT}")
    A(f"v_lshl_add_u32 v{vBK}, v{vT}, 5, v{vBK}     ; + (e&3)*32")
    A(f"v_lshrrev_b32 v{vT}, 2, v5")
    A(f"v_lshl_add_u32 v{vBK}, v{vT}, 4, v{vBK}     ; + (rho>>2)*16")
    A(f"v_add_u32 v{vBK}, s7, v{vBK}")
    A("s_lshl_b32 s7, s3, 2")
    A(f"s_add_u32 s7, s7, {LDS_S}")
    A(f"v_add_u32 v{vASw}, s7, v{vOWS}")
    A(f"v_mov_b32 v{vKS}, 0")
    A(f"v_mov_b32 v{vM}, 0xff7fffff")
    A(f"v_mov_b32 v{vMB}, 0xff7fffff")
    A("s_mov_b32 s12, 1")
    A("s_mov_b32 s13, 0")
    A("s_mov_b32 s8, 0")
    A("s_mov_b32 s9, 8")
    A("s_cmp_eq_u32 s3, 3")
    A(f"s_cselect_b32 s10, {3 * VSU + 1}, 0")
    if l2pf == 2 or l2pf == 3:
        A("s_cmp_lt_u32 s3, 2")
        A("s_cbranch_scc1 L_nopf")
        l2pf_addr()
        A("s_cmp_eq_u32 s3, 2")
        A("s_cselect_b32 s64, s34, s36")
        A("s_cselect_b32 s65, s35, s37")
        A("s_add_u32 s64, s64, s6")
        A("s_addc_u32 s65, s65, 0")
        step = 128 if l2pf == 2 else 64
        for k in range(4096 // step):
            A(f"s_load_dword s95, s[64:65], {k * step}")
        A("L_nopf:")
    A("s_cmp_lg_u32 s3, 0")
    A("s_cbranch_scc1 L_qdone")
    A("s_waitcnt vmcnt(4)")
    if sdiag:
        A("s_memrealtime s[56:57]")
    unpack(vC, vR, 16)
    A(f"v_lshl_add_u32 v{vT}, v3, 3, v2")
    A(f"v_lshlrev_b32 v{vT}, 4, v{vT}")
    A(f"v_add_u32 v{vT}, {LDS_Q}, v{vT}")
    for hb in range(2):
        A(f"s_waitcnt vmcnt({2 - 2*hb})")
        unpack(vX, vACC + 8 * hb, 8)
        rope(0, 8, vQ + 8 * hb)
        A(f"ds_write_b128 v{vT}, {r(vQ+8*hb,4)} offset:{2048*hb}")
        A(f"ds_write_b128 v{vT}, {r(vQ+8*hb+4,4)} offset:{2048*hb+1024}")
    A("L_qdone:")
    if sdiag:
        A("s_memrealtime s[58:59]")
    wg_sync(1)
    if sdiag:
        A("s_memrealtime s[60:61]")
        A("s_waitcnt lgkmcnt(0)")
    A(f"v_add_u32 v{vU}, {LDS_Q}, v{vOWS}")
    for k in range(4):
        A(f"ds_read_b128 {r(vQ+4*k,4)}, v{vU} offset:{k*1024}")
    if l2pf == 1:
        l2pf_vec("L_nopf")
    A("L_kunit:")
    A(f"v_add_u32 v{vAK0}, s8, v{vBK}")
    A(f"v_add_u32 v{vACS}, s8, v{vBCS}")
    A(f"v_xor_b32 v{vAK1}, 16, v{vAK0}")
    A("s_cmp_eq_u32 s12, s10")
    A("s_cbranch_scc1 L_vscales")
    A("L_kgo:")
    for hb in range(2):
        wait_landed()
        o = hb * 0x8000
        if hb == 0:
            for part in range(4):
                A(f"ds_read_b128 {r(vR+4*part,4)}, v{vACS} offset:{(part >> 1)*8192 + (part & 1)*1024}")
        A(f"ds_read_b128 {r(vX,4)}, v{vAK0} offset:{o}")
        A(f"ds_read_b128 {r(vX+8,4)}, v{vAK0} offset:{o+2048}")
        A(f"ds_read_u16_d16_hi v{vKZ}, v{vAKZ} offset:{hb*1024}")
        A(f"ds_read_b128 {r(vX+4,4)}, v{vAK1} offset:{o}")
        A(f"ds_read_b128 {r(vX+12,4)}, v{vAK1} offset:{o+2048}")
        A(f"ds_read_u16_d16_hi v{vKS}, v{vAKS} offset:{hb*1024}")
        if hb == 0:
            A("s_waitcnt lgkmcnt(8)")
            unpack(vC, vR, 8)
            A("s_waitcnt lgkmcnt(0)")
            set_done(1)
            unpack(vC + 16, vR + 8, 8)
        for part in range(2):
            if hb == 1:
                A(f"s_waitcnt lgkmcnt({3 if part == 0 else 0})")
                if part == 1:
                    set_done(2)
            for b in (vX + 4 * part, vX + 8 + 4 * part):
                for i in range(4):
                    A(f"v_cvt_f32_i32 v{b+i}, v{b+i}")
            for b in (vX + 4 * part, vX + 8 + 4 * part):
                for i in (0, 2):
                    A(f"v_pk_add_f32 {r(b+i,2)}, {r(b+i,2)}, {r(vKZ,2)} op_sel_hi:[1,0] neg_lo:[0,1] neg_hi:[0,1]")
            rope(4 * part, 4 * part + 4, vA)
        A(f"v_mul_f32 v{vU}, s81, v{vKS}")
        A("s_nop 0")
        A(f"v_mfma_f32_16x16x32_bf16 {r(vD,4)}, {r(vA,4)}, {r(vQ+8*hb,4)}, 0")
        A(f"v_mfma_f32_16x16x32_bf16 {r(vD,4)}, {r(vA+4,4)}, {r(vQ+8*hb+4,4)}, {r(vD,4)}")
        if hb:
            A(f"v_add_u32 v{vAKZ}, s9, v{vAKZ}")
            A(f"v_add_u32 v{vAKS}, s9, v{vAKS}")
            A(f"s_xor_b32 s9, s9, {8 ^ 120}")
            A("s_sub_u32 s8, 0xc000, s8")
            A("s_cmp_lt_u32 s12, 48")
            A("s_nop 2")
        else:
            A("s_nop 7")
        A(f"v_add_f32_dpp v{vS}, v{vD+1}, v{vD} row_ror:8 row_mask:0xf bank_mask:0x3")
        A(f"v_add_f32_dpp v{vS}, v{vD+2}, v{vD+3} row_ror:8 row_mask:0xf bank_mask:0xc")
        A(f"v_mul_f32 v{vS}, v{vS}, v{vU}")
        A(f"ds_write_b32 v{vASw}, v{vS} offset:{hb*16384}")
        A(f"v_max_f32 v{vMB if hb else vM}, v{vMB if hb else vM}, v{vS}")
    A(f"v_add_u32 v{vASw}, 1024, v{vASw}")
    A("s_cbranch_scc1 L_kunit")
    A("s_mov_b32 s12, 48")
    A(f"v_max_f32_dpp v{vM}, v{vM}, v{vM} row_ror:8 row_mask:0xf bank_mask:0xf")
    A(f"v_max_f32_dpp v{vMB}, v{vMB}, v{vMB} row_ror:8 row_mask:0xf bank_mask:0xf")
    A(f"v_mov_b32 v{vU}, v{vM}")
    A(f"v_mov_b32 v{vS}, v{vMB}")
    A("v_lshlrev_b32 v5, 4, v3")
    A(f"v_add_u32 v5, {LDS_MX}, v5")
    A(f"v_permlane16_swap_b32 v{vM}, v{vU}")
    A(f"v_permlane16_swap_b32 v{vMB}, v{vS}")
    A(f"v_max_f32 v{vM}, v{vM}, v{vU}")
    A(f"v_max_f32 v{vMB}, v{vMB}, v{vS}")
    A(f"v_mov_b32 v{vU}, v{vM}")
    A(f"v_mov_b32 v{vS}, v{vMB}")
    A("s_lshl_b32 s7, s3, 2")
    A(f"v_add_u32 v{vKZ}, s7, v5")
    A(f"v_permlane32_swap_b32 v{vM}, v{vU}")
    A(f"v_permlane32_swap_b32 v{vMB}, v{vS}")
    A(f"v_max_f32 v{vM}, v{vM}, v{vU}")
    A(f"v_max_f32 v{vMB}, v{vMB}, v{vS}")
    A(f"ds_write_b32 v{vKZ}, v{vM}")
    A(f"ds_write_b32 v{vKZ}, v{vMB} offset:128")
    A(f"v_lshlrev_b32 v{vBV}, 4, v4")
    A(f"v_xor_b32 v{vBV}, v{vBV}, v{vOWS}")
    A("s_lshl_b32 s7, s3, 10")
    A(f"v_add_u32 v{vBV}, s7, v{vBV}")
    A(f"v_add_u32 v{vASr}, {LDS_S}, v{vOWS}")
    A(f"v_lshlrev_b32 v{vAVS}, 4, v2")
    A(f"v_add_u32 v{vAVS}, {LDS_SC + 4096}, v{vAVS}")
    A(f"v_add_u32 v{vOML}, {WS_ML}, v{vOWS}")
    A(f"v_add_u32 v{vOWS}, s7, v{vOWS}              ; w*1024 + lane*16")
    A("s_lshl_b32 s7, s3, 13")
    A(f"v_add_u32 v{vASw}, s7, v{vASr}")
    A("s_lshl_b32 s7, s3, 9")
    A(f"v_add_u32 v{vACS}, s7, v{vAVS}")
    A(f"v_bfe_u32 v{vOOUT}, v1, 3, 2")
    A(f"v_lshl_add_u32 v{vOOUT}, v{vOOUT}, 1, v4")
    A(f"v_lshlrev_b32 v{vOOUT}, 3, v{vOOUT}")
    A(f"v_lshl_add_u32 v{vOOUT}, v3, 8, v{vOOUT}")
    A("s_lshl_b32 s7, s3, 6")
    A(f"v_add_u32 v{vOOUT}, s7, v{vOOUT}")
    mksrd(SWS, 42, 0 if nostore else 0x220000)
    mksrd(SOUT, 38, 131072)
    A("s_lshl_b32 s10, s5, 4")
    A("s_or_b32 s10, s10, s4")
    A("s_lshl_b32 s10, s10, 12")
    A("s_add_u32 s15, s10, 0x8000")
    A(f"s_add_u32 s{sEP}, s{sEP}, 0x9e3779b9")
    for i in range(4):
        A(f"s_bfe_u32 s{90+i}, s{sEP}, {hex((8 << 16) | (8 * i))}")
    A("s_mov_b32 s64, 0xffffff00")
    A("s_mov_b32 s8, 0")
    A(f"v_mov_b32 v{vL2}, 0")
    A(f"v_mov_b32 v{vL2+1}, 0")
    wg_sync(2)
    A(f"ds_read_b128 {r(vD,4)}, v5")
    A(f"ds_read_b128 {r(vA,4)}, v5 offset:128")
    A("s_cmp_ge_u32 s3, 2")
    A("s_cselect_b64 vcc, -1, 0")
    A("s_mov_b32 s9, 4")
    A("s_waitcnt lgkmcnt(0)")
    A(f"v_max3_f32 v{vMA}, v{vD}, v{vD+1}, v{vD+2}")
    A(f"v_max3_f32 v{vMA+1}, v{vA}, v{vA+1}, v{vA+2}")
    A(f"v_max_f32 v{vMA}, v{vMA}, v{vD+3}")
    A(f"v_max_f32 v{vMA+1}, v{vMA+1}, v{vA+3}")
    A(f"v_cndmask_b32 v{vM}, v{vMA}, v{vMA+1}, vcc")
    A("L_pblk:")
    A(f"ds_read_b128 {r(vP,4)}, v{vASw}")
    A(f"ds_read_b128 {r(vP+4,4)}, v{vASw} offset:1024")
    A(f"ds_read_b128 {r(vVS,4)}, v{vACS}")
    A(f"v_add_u32 v{vACS}, 128, v{vACS}")
    A("s_sub_u32 s9, s9, 1")
    A("s_cmp_lg_u32 s9, 0")
    A("s_waitcnt lgkmcnt(1)")
    for i in range(0, 8, 2):
        A(f"v_pk_add_f32 {r(vP+i,2)}, {r(vP+i,2)}, {r(vM,2)} op_sel_hi:[1,0] neg_lo:[0,1] neg_hi:[0,1]")
    for i in range(8):
        A(f"v_exp_f32 v{vP+i}, v{vP+i}")
    A("s_waitcnt lgkmcnt(0)")
    unpack(vVU, vVS, 4)
    for i in range(0, 8, 2):
        A(f"v_pk_mul_f32 {r(vVU+i,2)}, {r(vVU+i,2)}, {r(vP+i,2)}")
    for i in range(4):
        A(f"v_cvt_pk_bf16_f32 v{vPP+i}, v{vVU+2*i}, v{vVU+2*i+1}")
    A(f"ds_write_b128 v{vASw}, {r(vPP,4)}")
    for i in range(0, 8, 2):
        A(f"v_pk_add_f32 {r(vL2,2)}, {r(vL2,2)}, {r(vP+i,2)}")
    A(f"v_add_u32 v{vASw}, 2048, v{vASw}")
    A("s_cbranch_scc1 L_pblk")
    def fly(op, x, t, fill=()):
        A(f"v_{op}_f32_dpp v{x}, v{x}, v{x} row_ror:8 row_mask:0xf bank_mask:0xf")
        A(f"v_mov_b32 v{t}, v{x}")
        A("s_nop 1")
        A(f"v_permlane16_swap_b32 v{x}, v{t}")
        A(f"v_{op}_f32 v{x}, v{x}, v{t}")
        A(f"v_mov_b32 v{t}, v{x}")
        A("s_nop 1")
        A(f"v_permlane32_swap_b32 v{x}, v{t}")
        A(f"v_{op}_f32 v{x}, v{x}, v{t}")
    A(f"v_add_f32 v{vL}, v{vL2}, v{vL2+1}")
    A("s_and_b32 s7, s3, 2")
    A("s_lshl_b32 s6, s7, 2")
    fly("add", vL, vU)
    A(f"ds_write_b32 v{vKZ}, v{vL} offset:256")
    A("v_add_u32 v5, s6, v5")
    wg_sync(3)
    A("s_bitcmp1_b32 s3, 0")
    A("s_cbranch_scc1 L_vhead")
    A(f"ds_read_b64 {r(vL2,2)}, v5 offset:256")
    A("s_lshl_b32 s7, s7, 14")
    A("s_add_u32 s6, s10, s7")
    A("s_lshr_b32 s6, s6, 5")
    A("s_waitcnt lgkmcnt(0)")
    A(f"v_add_f32 v{vL}, v{vL2}, v{vL2+1}")
    A(f"v_mov_b32 v{vL2}, s{sEP}")
    A(f"v_mov_b32 v{vL2+1}, s{sEP}")
    A("s_mov_b64 exec, 0xff")
    A(f"buffer_store_dwordx4 {r(vM,4)}, v{vOML}, {srd(SWS)}, s6 offen sc1")
    A("s_mov_b64 exec, -1")
    def vcvt(ts):
        for t in ts:
            for j in range(4):
                A(f"v_cvt_f32_i32 v{vX+4*t+j}, v{vX+4*t+j}")
    def vpack(pr):
        for j in range(4):
            A(f"v_cvt_pk_bf16_f32 v{vA+2*j+pr}, v{vX+8*pr+j}, v{vX+8*pr+4+j}")
    def vstage(h):
        wait_landed()
        if h == 0:
            A(f"ds_read_b32 v{vU}, v{vF} offset:36")
        for t in range(4):
            A(f"ds_read_b128 {r(vX+4*t,4)}, v{vAV} offset:{(4*h+t)*4096}")
        A("s_waitcnt lgkmcnt(2)")
        if h == 0:
            A(f"v_mfma_f32_16x16x32_bf16 {r(vCOR,4)}, {r(vVZ,4)}, {r(vPP,4)}, {r(vCOR,4)}")
        vcvt([0, 1])
        vpack(0)
        A("s_waitcnt lgkmcnt(0)")
        vcvt([2, 3])
        vpack(1)
        for j in range(4):
            A(f"v_mfma_f32_16x16x16_bf16 {r(vACC+4*j,4)}, {r(vA+2*j,2)}, {r(vPP+2*h,2)}, {r(vACC+4*j,4)}")
        set_done(1)
        if h == 0:
            A(f"v_readfirstlane_b32 s9, v{vU}")
    A("L_vhead:")
    for i in range(20):
        A(f"v_mov_b32 v{vACC+i}, 0")
    A("L_vblk:")
    A(f"ds_read_b128 {r(vPP,4)}, v{vASr}")
    A(f"ds_read_b128 {r(vVZ,4)}, v{vAVS} offset:2048")
    A(f"v_add_u32 v{vASr}, 2048, v{vASr}")
    A(f"v_add_u32 v{vAVS}, 128, v{vAVS}")
    A(f"v_add_u32 v{vAV}, s8, v{vBV}")
    vstage(0)
    A("s_cmp_ge_u32 s12, 63")
    A("s_cbranch_scc1 L_hook")
    A("L_vmid:")
    vstage(1)
    A("s_add_u32 s8, s8, 0x8000")
    A(f"s_cmp_eq_u32 s8, {RING}")
    A("s_cselect_b32 s8, 0, s8")
    A("s_and_b32 s6, s12, 15")
    A("s_cbranch_scc1 L_vblk")
    for j in range(4):
        A(f"v_permlane32_swap_b32 v{vACC+4*j}, v{vACC+4*j+1}")
        A(f"v_permlane32_swap_b32 v{vACC+4*j+2}, v{vACC+4*j+3}")
    A("s_cmp_eq_u32 s12, 80")
    for j in range(4):
        A(f"v_add_f32_dpp v{vD+j}, v{vACC+4*j+1}, v{vACC+4*j} row_ror:8 row_mask:0xf bank_mask:0x3")
        A(f"v_add_f32_dpp v{vD+j}, v{vACC+4*j+2}, v{vACC+4*j+3} row_ror:8 row_mask:0xf bank_mask:0xc")
    A("s_cbranch_scc0 L_savea")
    for i in (0, 2):
        A(f"v_pk_mul_f32 {r(vD+i,2)}, {r(vD+i,2)}, {r(vMA,2)} op_sel:[0,1] op_sel_hi:[1,1]")
    A("s_cmp_eq_u32 s9, 7")
    for j in range(4):
        A(f"v_and_b32 v{vD+j}, s64, v{vD+j}")
    A("s_cbranch_scc1 L_check")
    for j in range(4):
        A(f"v_or_b32 v{vA+j}, s{90+j}, v{vD+j}")
    A(f"buffer_store_dwordx4 {r(vA,4)}, v{vOWS}, {srd(SWS)}, s15 offen sc1")
    A(f"s_cmp_lg_u32 s9, {RA}")
    A("s_cbranch_scc1 " + ("L_stamp" if stamps else "L_end"))
    for j in range(4):
        A(f"v_and_b32 v{vD+j}, s64, v{vDA+j}")
    A("s_waitcnt vmcnt(1)")
    A("s_branch L_check2")
    A("L_check:")
    A("s_waitcnt vmcnt(0)")
    A("L_check2:")
    if stamps:
        A("s_mov_b32 s11, 1")
    for k in range(7):
        for j in range(4):
            A(f"v_xor_b32 v{vO+4*k+j}, s{90+j}, v{vO+4*k+j}")
    A(f"v_or_b32 v{vU}, v{vO}, v{vO+1}")
    A(f"v_or_b32 v{vS}, v{vO+2}, v{vO+3}")
    for i in range(4, 28, 2):
        t = vU if (i & 2) == 0 else vS
        A(f"v_or3_b32 v{t}, v{t}, v{vO+i}, v{vO+i+1}")
    A(f"v_or_b32 v{vU}, v{vU}, v{vS}")
    A(f"v_and_b32 v{vU}, 0xff, v{vU}")
    A(f"v_cmp_ne_u32 vcc, 0, v{vU}")
    if not nostore:
        A("s_cbranch_vccnz L_retry")
    A("L_sum:")
    os_ = [vD] + [vO + 4 * k for k in range(7)]
    for st in (1, 2, 4):
        for k in range(0, 8, 2 * st):
            for i in (0, 2):
                A(f"v_pk_add_f32 {r(os_[k]+i,2)}, {r(os_[k]+i,2)}, {r(os_[k+st]+i,2)}")
    A(f"v_cvt_pk_bf16_f32 v4, v{vD}, v{vD+1}")
    A(f"v_cvt_pk_bf16_f32 v5, v{vD+2}, v{vD+3}")
    A(f"buffer_store_dwordx2 v[4:5], v{vOOUT}, {srd(SOUT)}, s14 offen")
    A("s_lshl_b32 s6, s3, 3")
    A("s_or_b32 s6, s6, s9")
    A("s_cmp_lg_u32 s6, 7")
    A("s_cbranch_scc1 " + ("L_stamp" if stamps else "L_end"))
    A(f"v_mov_b32 v{vT}, 0")
    A(f"v_mov_b32 v{vU}, s{sEP}")
    A("s_mov_b64 exec, 1")
    A(f"buffer_store_dword v{vU}, v{vT}, {srd(SWS)}, s94 offen")
    A("s_branch " + ("L_stamp" if stamps else "L_end"))
    A("L_retry:")
    A("s_mov_b32 s65, 0")
    for k in range(7):
        A(f"v_or3_b32 v{vU}, v{vO+4*k}, v{vO+4*k+1}, v{vO+4*k+2}")
        A(f"v_or_b32 v{vU}, v{vU}, v{vO+4*k+3}")
        A(f"v_and_b32 v{vU}, 0xff, v{vU}")
        A(f"v_cmp_ne_u32 vcc, 0, v{vU}")
        A(f"s_cbranch_vccz L_rok{k}")
        A(f"s_xor_b32 s6, s66, {(k+1) << 12}")
        A(f"s_bitset1_b32 s65, {k}")
        A(f"buffer_load_dwordx4 {r(vO+4*k,4)}, v{vOWS}, {srd(SWS)}, s6 offen sc1")
        A(f"L_rok{k}:")
    A("s_cmp_eq_u32 s65, 0")
    A("s_cbranch_scc1 L_sum")
    if stamps:
        A("s_add_u32 s11, s11, 1")
    guard()
    A("s_waitcnt vmcnt(0)")
    for k in range(7):
        A(f"s_bitcmp0_b32 s65, {k}")
        A(f"s_cbranch_scc1 L_rx{k}")
        for j in range(4):
            A(f"v_xor_b32 v{vO+4*k+j}, s{90+j}, v{vO+4*k+j}")
        A(f"L_rx{k}:")
    A("s_branch L_retry")
    A("L_savea:")
    for j in range(4):
        A(f"v_mov_b32 v{vDA+j}, v{vD+j}")
    A("s_branch L_vhead")
    A("L_vscales:")
    scales((26, 28), LDS_SC + 4096)
    if touch == 2:
        touches()
        A("s_waitcnt lgkmcnt(0)")
    A("s_branch L_kgo")
    A("L_hook:")
    A(f"s_cmp_lg_u32 s12, {48 + 2 * FB + 1}")
    A("s_cbranch_scc1 L_h1")
    A("L_mlload:")
    A("s_lshl_b32 s6, s5, 11")
    A(f"buffer_load_dwordx3 {r(vML,3)}, v{vOML}, {srd(SWS)}, s6 offen sc1")
    A(f"buffer_load_dwordx3 {r(vML+4,3)}, v{vOML}, {srd(SWS)}, s6 offen offset:1024 sc1")
    A("L_h1:")
    A(f"s_cmp_lg_u32 s12, {48 + 2 * (FB + 1) + 1}")
    A("s_cbranch_scc1 L_h2")
    A("; normalisation factors exp2(m - M) / L of both heads from the statistics of all members")
    guard()
    A("s_waitcnt vmcnt(0)")
    A(f"v_xor_b32 v{vU}, s{sEP}, v{vML+2}")
    A(f"v_xor_b32 v{vS}, s{sEP}, v{vML+6}")
    A(f"v_or_b32 v{vU}, v{vU}, v{vS}")
    A(f"v_cmp_ne_u32 vcc, 0, v{vU}")
    if not nostore:
        A("s_cbranch_vccnz L_mlload")
    for hb in range(2):
        b = vML + 4 * hb
        A(f"v_mov_b32 v{vS}, v{b}")
        A("s_nop 1")
        fly("max", vS, vU)
        A(f"v_sub_f32 v{b}, v{b}, v{vS}")
        A(f"v_sub_f32 v{vMA+hb}, v{vMA+hb}, v{vS}")
        A(f"v_exp_f32 v{b}, v{b}")
        A(f"v_exp_f32 v{vMA+hb}, v{vMA+hb}")
        A(f"v_mul_f32 v{b}, v{b}, v{b+1}")
        A("s_nop 1")
        fly("add", b, vU)
        A(f"v_rcp_f32 v{b}, v{b}")
        A("s_nop 0")
        A(f"v_mul_f32 v{vMA+hb}, v{vMA+hb}, v{b}")
    for i in (0, 2):
        A(f"v_pk_mul_f32 {r(vDA+i,2)}, {r(vDA+i,2)}, {r(vMA,2)} op_sel_hi:[1,0]")
    for j in range(4):
        A(f"v_and_b32 v{vDA+j}, s64, v{vDA+j}")
        A(f"v_or_b32 v{vDA+j}, s{90+j}, v{vDA+j}")
    A("L_h2:")
    A(f"s_cmp_lg_u32 s12, {48 + 2 * PA + 1}")
    A("s_cbranch_scc1 L_h3")
    A(f"buffer_store_dwordx4 {r(vDA,4)}, v{vOWS}, {srd(SWS)}, s10 offen sc1")
    A("L_h3:")
    A("s_and_b32 s6, s12, 15")
    A("s_cmp_lg_u32 s6, 15")
    A("s_cbranch_scc1 L_vmid")
    for i in range(0, 16, 2):
        A(f"v_pk_add_f32 {r(vACC+i,2)}, {r(vACC+i,2)}, {r(vCOR,2)} op_sel_hi:[1,0] neg_lo:[0,1] neg_hi:[0,1]")
    A("s_cmp_lg_u32 s12, 79")
    A("s_cbranch_scc1 L_vmid")
    A("s_cmp_eq_u32 s9, 7")
    A("s_cselect_b32 s66, s15, s10")
    A("s_cselect_b32 s6, 2048, 0")
    A("s_add_u32 s14, s14, s6")
    A("s_cmp_eq_u32 s9, 7")
    A("s_cbranch_scc1 L_pre")
    A(f"s_cmp_lg_u32 s9, {RA}")
    A("s_cbranch_scc1 L_nopre")
    A("L_pre:")
    for k in range(7):
        A(f"s_xor_b32 s6, s66, {(k+1) << 12}")
        A(f"buffer_load_dwordx4 {r(vO+4*k,4)}, v{vOWS}, {srd(SWS)}, s6 offen sc1")
    A("L_nopre:")
    if lastbar:
        A("s_mov_b32 s13, 80")
        A("s_barrier")
    A("s_branch L_vmid")
    if stamps:
        A("L_stamp:")
        A("s_memrealtime s[86:87]")
        A("s_getreg_b32 s88, hwreg(HW_REG_XCC_ID)")
        A("s_lshl_b32 s7, s9, 8")
        A("s_or_b32 s88, s88, s7")
        A("s_waitcnt lgkmcnt(0)")
        A("s_mov_b64 exec, 1")
        A("v_mov_b32 v8, s84")
        A("v_mov_b32 v9, s85")
        A("v_mov_b32 v10, s86")
        A("v_mov_b32 v11, s87")
        A("v_mov_b32 v12, s88")
        A("v_mov_b32 v13, s11")
        A("s_lshl_b32 s89, s2, 2")
        A("s_or_b32 s89, s89, s3")
        A("s_lshl_b32 s89, s89, 5")
        A("s_add_u32 s89, s89, 0x400000")
        A("v_mov_b32 v2, 0")
        A(f"s_mov_b32 s{SWS+2}, 0x800000")
        A(f"buffer_store_dwordx4 v[8:11], v2, {srd(SWS)}, s89 offen")
        A(f"buffer_store_dwordx2 v[12:13], v2, {srd(SWS)}, s89 offen offset:16")
        if sdiag:
            A("v_mov_b32 v8, s56")
            A("v_mov_b32 v9, s58")
            A("v_mov_b32 v10, s60")
            A("s_add_u32 s89, s89, 0x200000")
            A(f"buffer_store_dwordx4 v[8:11], v2, {srd(SWS)}, s89 offen")
    A("L_end:")
    A("s_endpgm")
    A('.section .rodata,"a"')
    A(".p2align 6")
    A(f".amdhsa_kernel {KNAME}")
    A(f"  .amdhsa_next_free_vgpr {NV}")
    A("  .amdhsa_next_free_sgpr 96")
    A(f"  .amdhsa_accum_offset {NV}")
    A("  .amdhsa_group_segment_fixed_size 0")
    A("  .amdhsa_kernarg_size 112")
    A("  .amdhsa_user_sgpr_count 2")
    A("  .amdhsa_user_sgpr_kernarg_segment_ptr 1")
    A("  .amdhsa_system_sgpr_workgroup_id_x 1")
    A("  .amdhsa_float_denorm_mode_32 3")
    A(".end_amdhsa_kernel")
    return "\n".join(L) + "\n"

if __name__ == "__main__":
    kw = eval("dict(" + (sys.argv[2] if len(sys.argv) > 2 else "") + ")")
    open(sys.argv[1], "w").write(gen(**kw))
```

```python
import sys, math, struct
KNAME = "standalone__kv_cache_quant_pre_rope_vs_post_rope__sampling_kernel"
HEADER = open("standalone__kv_cache_quant_pre_rope_vs_post_rope__sampling.s.ref").read().split("; Override launch")[0]

def f2u(x):
    return struct.unpack("<I", struct.pack("<f", x))[0]

def gen(DK=40, DV=22, nt="nt", TS=75, PA=14, VSU=10, stamps=False, nocs=False, touch=0, mpre=True, spin=1 << 22,
        l2pf=4, nostore=False, sdiag=False, FB=4, RA=4, lastbar=True, latebar=2, align=False, probe=None, noq=False, nosc=False, noep=False, ilv=9, csnt='', static=False, CP=(), DW0=20, LAG=2, CK=None, RM=None, SET=(), outfl='', NSET=1, GP=1, levels=(28, 24, 22, 20, 18, 16)):
    cst = stamps
    stamps = stamps or align
    assert 17 <= DK <= 48 and 17 <= DV <= 32 and TS <= 79 and FB + 1 <= 6 and 8 <= PA <= 15 and TS >= 58 + 2 * FB
    L = []
    def A(s=""):
        L.append(s if (s.endswith(":") or s.startswith(".") or s.startswith(";")) else "    " + s)
    RING = 0x18000
    LDS_S = RING
    LDS_SC = LDS_S + 0x8000
    LDS_Q = LDS_SC + 0x2000
    LDS_MX = LDS_Q + 4096
    LDS_LX = LDS_MX + 256
    LDS_F = LDS_LX + 128
    lds = LDS_F + 64
    WS_ML = 0x200000
    WS_EP = 0x210000
    EPST = 4096 + 256
    L.append(HEADER.rstrip())
    A(f"; @launch grid=(256,1,1) block=(320,1,1) lds={lds}")
    A('.amdgcn_target "amdgcn-amd-amdhsa--gfx950"')
    A(".text")
    A(f".globl {KNAME}")
    A(".p2align 8")
    A(f".type {KNAME},@function")
    A(f"{KNAME}:")
    A("s_cmp_ge_u32 s2, 256")
    A("s_cbranch_scc1 L_end")
    if align:
        A("s_load_dwordx2 s[40:41], s[0:1], 96")
        A("s_memrealtime s[84:85]")
        A("v_readfirstlane_b32 s3, v0")
        A("s_waitcnt lgkmcnt(0)")
        A("s_cmp_lg_u32 s3, 0")
        A("s_cbranch_scc1 L_al2")
        A("s_add_u32 s86, s84, 800")
        A("s_mov_b32 s88, s86")
        A("s_mov_b32 s87, 0")
        A("s_atomic_cmpswap s[86:87], s[40:41], 0xf0 glc")
        A("s_waitcnt lgkmcnt(0)")
        A("s_cmp_eq_u32 s86, 0")
        A("s_cselect_b32 s86, s88, s86")
        A("L_al1:")
        A("s_memrealtime s[84:85]")
        A("s_waitcnt lgkmcnt(0)")
        A("s_sub_u32 s87, s84, s86")
        A("s_cmp_lt_i32 s87, 0")
        A("s_cbranch_scc1 L_al1")
        A("L_al2:")
        A("s_barrier")
    if stamps or probe:
        A("s_memrealtime s[84:85]")
    A("s_load_dwordx16 s[16:31], s[0:1], 0")
    A("s_load_dwordx8 s[32:39], s[0:1], 64")
    A("s_load_dwordx4 s[40:43], s[0:1], 96")
    A("v_lshrrev_b32 v2, 6, v0")
    A("v_and_b32 v1, 63, v0")
    A("v_readfirstlane_b32 s3, v2")
    A("s_and_b32 s4, s2, 7                        ; member m")
    A("s_lshr_b32 s5, s2, 3")
    A("v_lshrrev_b32 v2, 3, v1                    ; lane>>3")
    A("v_and_b32 v3, 7, v1                        ; lane&7")
    A("v_lshrrev_b32 v4, 5, v1                    ; lane>>5")
    A(f"v_mov_b32 v23, {LDS_F}")
    A("s_mov_b32 s83, 0")
    A("s_cmp_lg_u32 s3, 0")
    A("s_cbranch_scc1 L_consumer")
    A("s_setprio 3")
    A("v_mov_b32 v6, 0")
    A("ds_write_b32 v23, v6 offset:32")
    A("v_xor_b32 v5, v3, v4")
    A("v_lshlrev_b32 v5, 4, v5")
    A("v_lshl_add_u32 v10, v2, 12, v5")
    A("v_lshlrev_b32 v5, 2, v4")
    A("v_xor_b32 v5, v5, v3")
    A("v_lshlrev_b32 v5, 4, v5")
    A("v_lshl_add_u32 v11, v2, 11, v5")
    A("s_lshl_b32 s7, s5, 22")
    A("s_lshl_b32 s6, s4, 15")
    A("s_add_u32 s7, s7, s6                       ; g*4M + m*32K")
    A("s_sub_u32 s10, 0x400000, s6")
    A("s_mov_b32 s11, 0x00020000")
    A("s_lshr_b32 s6, s6, 1")
    A(f"s_sub_u32 s14, {0 if nocs else 0x100000}, " + ("0" if nocs else "s6"))
    A("s_mov_b32 s15, 0x00020000")
    A("s_mov_b32 s62, s14")
    A("s_mov_b32 s63, 0x00020000")
    A("s_mov_b32 s44, 0                           ; unit byte offset in the tensor")
    A("s_mov_b32 s45, 2048")
    A("s_mov_b32 s46, 0")
    A("s_mov_b32 s47, 0")
    A("s_mov_b32 s48, 0                           ; ring offset")
    A("v_mov_b32 v12, 0")
    A("v_mov_b32 v13, 0")
    A("v_mov_b32 v14, 0")
    A("v_mov_b32 v15, 0")
    A("s_waitcnt lgkmcnt(0)")
    if sdiag:
        A("s_memrealtime s[64:65]")
    if not latebar:
        A("s_barrier")
    if sdiag:
        A("s_memrealtime s[66:67]")
    A("s_add_u32 s8, s18, s7")
    A("s_addc_u32 s9, s19, 0")
    A("s_add_u32 s12, s34, s6")
    A("s_addc_u32 s13, s35, 0")
    A("s_add_u32 s60, s36, s6")
    A("s_addc_u32 s61, s37, 0")
    A(f"s_mul_i32 s56, s5, {EPST}")
    A(f"s_add_u32 s56, s56, {WS_EP}")
    def take(k):
        A(f"s_mov_b32 s{64+k}, 1")
        A(f"s_add_u32 s6, s56, {4*k}")
        A(f"s_atomic_add s{64+k}, s[42:43], s6 glc")
    def apply(k, mp):
        val = 0
        for j, d in enumerate(mp):
            assert d in levels
            val |= d << (8 * j)
        A("s_waitcnt lgkmcnt(0)")
        A(f"s_sub_u32 s6, s{64+k}, s{72+k}")
        A("s_and_b32 s6, s6, 7")
        A("s_lshl_b32 s6, s6, 3")
        A(f"s_mov_b32 s68, {hex(val & 0xffffffff)}")
        A(f"s_mov_b32 s69, {hex(val >> 32)}")
        A("s_lshr_b64 s[68:69], s[68:69], s6")
        A("s_and_b32 s58, s68, 0xff")
    cnt = [0]
    def stamp():
        if probe:
            A(f"s_cmp_lg_u32 s47, {probe[0]}")
            A(f"s_cbranch_scc1 L_pr{cnt[0]}")
            A("s_memrealtime s[70:71]")
            A(f"L_pr{cnt[0]}:")
            cnt[0] += 1
        if cst:
            A("s_memrealtime s[50:51]")
            A("s_lshl_b64 exec, 1, s47")
            A("s_cmp_lt_u32 s47, 64")
            A("s_waitcnt lgkmcnt(0)")
            A(f"s_cbranch_scc0 L_st{cnt[0]}")
            A("v_mov_b32 v8, s50")
            A(f"s_branch L_su{cnt[0]}")
            A(f"L_st{cnt[0]}:")
            A("v_mov_b32 v9, s50")
            A(f"L_su{cnt[0]}:")
            A("s_mov_b64 exec, -1")
            cnt[0] += 1
    def publish():
        stamp()
        A("v_mov_b32 v6, s47")
        A("ds_write_b32 v23, v6 offset:32")
    stalls = []
    def body(name, D, kind, soff):
        A(f"L_{name}:")
        if ilv and name == "ka":
            A("s_lshr_b32 s49, s44, 1")
            A("s_add_u32 s54, s44, 0x200000")
        A("v_min3_u32 v7, v12, v13, v14")
        A("v_min_u32 v7, v7, v15")
        A("s_sub_u32 s52, s46, 5")
        A("v_readfirstlane_b32 s53, v7")
        A("s_mov_b32 m0, s48")
        A("s_cmp_lt_i32 s53, s52")
        A(f"s_cbranch_scc1 L_{name}_full")
        stalls.append(name)
        for p in range(16):
            if ilv and name != "v":
                bi = {"ka": 0, "cs": 1, "kb": 2}[name]
                seq = []
                kk = cc = 0
                if ilv == 9:
                    seq = [("c", 8 + i) for i in range(8)] + [("k", i) for i in range(16)] + [("c", i) for i in range(8)] + [("k", 16 + i) for i in range(16)]
                while len(seq) < 48:
                    for _ in range(2 * ilv):
                        seq.append(("k", kk)); kk += 1
                    for _ in range(ilv):
                        seq.append(("c", cc)); cc += 1
                ty, ix = seq[bi * 16 + p]
                if ty == "k":
                    lo = (0 if ix < 16 else 0x8000) + (ix & 15) * 896
                else:
                    lo = 0x4000 + (ix >> 3) * 8192 + (ix & 7) * 896
                if p and seq[bi * 16 + p - 1] == (ty, ix - 1) and (ix & (15 if ty == "k" else 7)):
                    A("s_addk_i32 m0, 0x380")
                elif lo != bi * 0x4000 or p:
                    A(f"s_add_u32 m0, s48, {(lo - bi * 0x4000) & 0xffffffff}")
            elif p:
                if kind == "cs" and p == 8:
                    A(f"s_addk_i32 m0, {hex(8192 - 7 * 896)}")
                else:
                    A("s_addk_i32 m0, 0x380")
            A(f"s_waitcnt vmcnt({D-1})")
            if p == (D - 17) % 16:
                if D > 32:
                    A("s_sub_u32 s47, s47, 1")
                    A("s_max_i32 s47, s47, 0")
                publish()
            if p == 13:
                A("ds_read_b128 v[12:15], v23")
            if ilv and name != "v":
                if ty == "k":
                    A(f"buffer_load_dwordx4 v10, s[8:11], {'s44' if ix < 16 else 's54'} offen offset:{128*(ix&15)} {nt} lds")
                else:
                    A(f"buffer_load_dwordx4 v11, {'s[12:15]' if ix < 8 else 's[60:63]'}, s49 offen offset:{128*(ix&7)} {csnt} lds")
            elif kind == "cs":
                A(f"buffer_load_dwordx4 v11, {'s[12:15]' if p < 8 else 's[60:63]'}, {soff} offen offset:{128*(p&7)} {csnt} lds")
            else:
                A(f"buffer_load_dwordx4 v10, s[8:11], {soff} offen offset:{128*p} {nt} lds")
        if sdiag and name != "v":
            k = {"ka": 0, "cs": 1, "kb": 2}[name]
            A(f"s_cmp_lg_u32 s46, {k}")
            A(f"s_cbranch_scc1 L_sd{name}")
            A(f"s_memrealtime s[{68+2*k}:{69+2*k}]")
            A(f"L_sd{name}:")
        A("s_mov_b32 s47, s46")
        A("s_add_u32 s46, s46, 1")
        A("s_add_u32 s48, s48, 0x4000")
        if name in ("kb", "v"):
            A(f"s_cmp_eq_u32 s48, {RING}")
            A("s_cselect_b32 s48, 0, s48")
    body("ka", DK, "k", "s44")
    if latebar:
        A("s_cmp_lg_u32 s46, 1")
        A("s_cbranch_scc1 L_nobar")
        A("s_barrier")
        A("s_load_dwordx4 s[72:75], s[42:43], s56")
        A("L_nobar:")
    if not ilv:
        A("s_lshr_b32 s49, s44, 1")
    body("cs", DK, "cs", "s49")
    if not ilv:
        A("s_add_u32 s54, s44, 0x200000")
    body("kb", DK, "k", "s54")
    A("s_add_u32 s44, s44, s45")
    A(f"s_xor_b32 s45, s45, {2048 ^ (0x40000 - 2048)}")
    if CK:
        A(f"s_cmp_lg_u32 s46, {CK[0]}")
        A("s_cbranch_scc1 L_nock")
        take(3)
        A("L_nock:")
    A("s_cmp_lt_u32 s46, 48")
    A("s_cbranch_scc1 L_ka")
    A("s_add_u32 s8, s24, s7")
    A("s_addc_u32 s9, s25, 0")
    A("s_mov_b32 s44, 0")
    A(f"s_mov_b32 s47, {45 if DK > 32 else 46}")
    events = sorted([(t, "take", k + 1, None) for k, (t, _) in enumerate(CP)] + [(t + LAG, "apply", k + 1, mp) for k, (t, mp) in enumerate(CP)] + [(TS, "take", 0, None)]
                    + ([(TS + LAG, "apply", 0, RM)] if RM else []) + [(t, "set", 0, d) for t, d in SET])
    times = sorted(set(e[0] for e in events)) + [80]
    assert times[0] > 48 and times[-2] < 80 and len(CP) <= (2 if CK else 3)
    A(f"s_mov_b32 s55, {times[0]}")
    A(f"s_mov_b32 s58, {DW0}")
    A("s_mov_b32 s59, 768")
    if CK:
        apply(3, CK[1])
    else:
        A("s_waitcnt lgkmcnt(0)")
    A("L_v:")
    A("v_min3_u32 v7, v12, v13, v14")
    A("v_min_u32 v7, v7, v15")
    A("s_sub_u32 s52, s46, 5")
    A("v_readfirstlane_b32 s53, v7")
    A("s_mov_b32 m0, s48")
    A("s_cmp_lt_i32 s53, s52")
    A("s_cbranch_scc1 L_v_full")
    stalls.append("v")
    A("L_vg:")
    for lv in levels[:-1]:
        A(f"s_waitcnt vmcnt({lv})")
        A(f"s_cmp_ge_u32 s58, {lv}")
        A("s_cbranch_scc1 L_vw")
    A(f"s_waitcnt vmcnt({levels[-1]})")
    A("L_vw:")
    A(f"buffer_load_dwordx4 v10, s[8:11], s44 offen {nt} lds")
    A("s_addk_i32 m0, 0x380")
    A("s_sub_u32 s53, s59, s58")
    A(f"buffer_load_dwordx4 v10, s[8:11], s44 offen offset:128 {nt} lds")
    A("s_addk_i32 m0, 0x380")
    A("s_lshr_b32 s53, s53, 4")
    A(f"buffer_load_dwordx4 v10, s[8:11], s44 offen offset:256 {nt} lds")
    A("s_addk_i32 m0, 0x380")
    A("s_add_u32 s59, s59, 4")
    A(f"buffer_load_dwordx4 v10, s[8:11], s44 offen offset:384 {nt} lds")
    A(f"s_addk_i32 m0, {hex(4096 - 3 * 896)}")
    A("s_add_u32 s44, s44, 512")
    A("s_cmp_le_u32 s53, s47")
    A("s_cbranch_scc1 L_vnp")
    A("s_mov_b32 s47, s53")
    publish()
    A("L_vnp:")
    A("ds_read_b128 v[12:15], v23")
    A("s_and_b32 s53, s59, 15")
    A("s_cbranch_scc1 L_vg")
    A("s_add_u32 s46, s46, 1")
    A("s_add_u32 s48, s48, 0x4000")
    A(f"s_cmp_eq_u32 s48, {RING}")
    A("s_cselect_b32 s48, 0, s48")
    A("s_bitcmp0_b32 s46, 0")
    A(f"s_cselect_b32 s53, {0x40000 - 4096}, 0")
    A("s_add_u32 s44, s44, s53")
    A("s_cmp_lg_u32 s46, s55")
    A("s_cbranch_scc1 L_v")
    for i, t in enumerate(times[:-1]):
        A(f"s_cmp_lg_u32 s46, {t}")
        A(f"s_cbranch_scc1 L_ev{i}")
        for (tt, kind, k, mp) in [e for e in events if e[0] == t and e[1] != "take"] + [e for e in events if e[0] == t and e[1] == "take"]:
            if kind == "take":
                if static and k == 0:
                    A("s_add_u32 s64, s72, s4")
                else:
                    take(k)
            elif kind == "set":
                A(f"s_mov_b32 s58, {mp}")
            else:
                apply(k, mp)
        A(f"s_mov_b32 s55, {times[i+1]}")
        A("s_branch L_v")
        A(f"L_ev{i}:")
    if stamps:
        A("s_waitcnt lgkmcnt(0)")
        A("s_sub_u32 s57, s64, s72")
        A("v_mov_b32 v16, s57")
        A("ds_write_b32 v23, v16 offset:36")
    A("s_mov_b32 s47, 79")
    A("s_waitcnt vmcnt(16)")
    publish()
    A("s_mov_b32 s47, 80")
    A("s_waitcnt vmcnt(8)")
    A("s_barrier")
    A("s_waitcnt vmcnt(0)")
    if lastbar:
        stamp()
        if align and not cst:
            A("s_memrealtime s[50:51]")
        A("s_barrier")
        if align and not cst:
            A("s_mov_b32 s60, s42")
            A("s_mov_b32 s61, s43")
            A("s_mov_b32 s62, 0x800000")
            A("s_mov_b32 s63, 0x00020000")
            A("s_lshl_b32 s55, s2, 2")
            A("s_add_u32 s55, s55, 0x500000")
            A("v_mov_b32 v2, 0")
            A("s_waitcnt lgkmcnt(0)")
            A("v_mov_b32 v8, s50")
            A("s_mov_b64 exec, 1")
            A("buffer_store_dword v8, v2, s[60:63], s55 offen")
    else:
        publish()
    if cst:
        A("s_mov_b32 s60, s42")
        A("s_mov_b32 s61, s43")
        A("s_mov_b32 s62, 0x800000")
        A("s_mov_b32 s63, 0x00020000")
        A("s_lshl_b32 s55, s2, 10")
        A("s_add_u32 s55, s55, 0x500000")
        A("v_lshlrev_b32 v2, 2, v1")
        A("buffer_store_dword v8, v2, s[60:63], s55 offen")
        A("buffer_store_dword v9, v2, s[60:63], s55 offen offset:256")
        A("v_mov_b32 v10, s83")
        if sdiag:
            for k in range(5):
                A(f"v_writelane_b32 v10, s{64+2*k}, {1+k}")
        A("buffer_store_dword v10, v2, s[60:63], s55 offen offset:512")
    if probe:
        X, wg, G, base = probe
        if wg is not None:
            A(f"s_cmp_lg_u32 s2, {wg}")
            A("s_cbranch_scc1 L_end")
        A("s_waitcnt lgkmcnt(0)")
        A("s_sub_u32 s70, s70, s84")
        A(f"s_sub_u32 s70, s70, {base}")
        A(f"s_mul_i32 s70, s70, {G}")
        A("s_add_u32 s70, s70, 6000")
        A("s_min_u32 s70, s70, 30000")
        A("L_spin:")
        A("s_memrealtime s[86:87]")
        A("s_waitcnt lgkmcnt(0)")
        A("s_sub_u32 s86, s86, s84")
        A("s_cmp_lt_u32 s86, s70")
        A("s_cbranch_scc1 L_spin")
    A("s_endpgm")
    for name in stalls:
        A(f"L_{name}_full:")
        A("ds_read_b128 v[12:15], v23")
        A("s_add_u32 s83, s83, 1")
        A(f"s_cmp_gt_u32 s83, {spin}")
        A("s_cbranch_scc1 L_end")
        A("s_waitcnt lgkmcnt(0)")
        A(f"s_branch L_{name}")
    vBK, vAK0, vAK1, vBCS, vACS, vASw, vAKZ, vAKS, vOWS, vOML, vOOUT, vAD = range(6, 18)
    vBV, vAV, vASr, vAVS = vBK, vAK0, vAK1, vAKS
    vM, vL, vL2, vT, vF = 18, 19, 20, 22, 23
    vMB = 21
    vKZ, vKS, vU, vS = 24, 25, 26, 27
    vD = 28; vQ = 32; vA = 48; vX = 56
    vR = 72; vC = 88; vW = 120
    vP = 72; vPP = 80; vVS = 84; vVZ = 32; vVU = 36; vQP = 44; vN = 45; vOG = 46
    vO = 88; vML = vO + 28
    vACC = 136; vCOR = 152; vDA = 156; vMA = 160
    NV = 164
    SWS, SOUT, ST = 68, 72, 76
    sEP = 82
    def r(a, n):
        return f"v[{a}:{a+n-1}]"
    def srd(s):
        return f"s[{s}:{s+3}]"
    def mksrd(s, ptr, size):
        A(f"s_mov_b32 s{s}, s{ptr}")
        A(f"s_mov_b32 s{s+1}, s{ptr+1}")
        A(f"s_mov_b32 s{s+2}, {size}")
        A(f"s_mov_b32 s{s+3}, 0x00020000")
    def unpack(dst, src, n):
        for i in range(n):
            A(f"v_lshlrev_b32 v{dst+2*i}, 16, v{src+i}")
            A(f"v_and_b32 v{dst+2*i+1}, s80, v{src+i}")
    def rope(i0, i1, dst):
        Clo, Chi, Slo, Shi = vC, vC + 8, vC + 16, vC + 24
        for i in range(i0, i1, 2):
            A(f"v_pk_mul_f32 {r(vW+i,2)}, {r(vX+i,2)}, {r(Clo+i,2)}")
            A(f"v_pk_mul_f32 {r(vW+8+i,2)}, {r(vX+8+i,2)}, {r(Chi+i,2)}")
        for i in range(i0, i1, 2):
            A(f"v_pk_fma_f32 {r(vW+i,2)}, {r(vX+8+i,2)}, {r(Slo+i,2)}, {r(vW+i,2)} neg_lo:[1,0,0] neg_hi:[1,0,0]")
            A(f"v_pk_fma_f32 {r(vW+8+i,2)}, {r(vX+i,2)}, {r(Shi+i,2)}, {r(vW+8+i,2)}")
        for i in range(i0, i1, 2):
            A(f"v_cvt_pk_bf16_f32 v{dst+i//2}, v{vW+i}, v{vW+i+1}")
            A(f"v_cvt_pk_bf16_f32 v{dst+4+i//2}, v{vW+8+i}, v{vW+8+i+1}")
    wl = [0]
    def guard():
        A("s_add_u32 s83, s83, 1")
        A(f"s_cmp_gt_u32 s83, {spin}")
        A("s_cbranch_scc1 L_end")
    def wait_landed():
        k = wl[0]; wl[0] += 1
        A("s_cmp_gt_u32 s13, s12")
        A(f"s_cbranch_scc1 L_wl{k}_ok")
        A(f"L_wl{k}:")
        A(f"ds_read_b32 v{vT}, v{vF} offset:32")
        guard()
        A("s_waitcnt lgkmcnt(0)")
        A(f"v_readfirstlane_b32 s13, v{vT}")
        A("s_cmp_gt_u32 s13, s12")
        A(f"s_cbranch_scc0 L_wl{k}")
        A(f"L_wl{k}_ok:")
    def set_done(inc):
        A("s_add_u32 s6, s12, 1")
        A(f"v_mov_b32 v{vT}, s6")
        A(f"ds_write_b32 v{vAD}, v{vT}")
        A(f"s_add_u32 s12, s12, {inc}")
    def wg_sync(val):
        k = wl[0]; wl[0] += 1
        A(f"v_mov_b32 v{vT}, {val}")
        A("s_waitcnt vmcnt(0) lgkmcnt(0)")
        A(f"ds_write_b32 v{vAD}, v{vT} offset:16")
        A(f"L_ws{k}:")
        A(f"ds_read_b128 {r(vD,4)}, v{vF} offset:16")
        guard()
        A("s_waitcnt lgkmcnt(0)")
        A(f"v_min3_u32 v{vT}, v{vD}, v{vD+1}, v{vD+2}")
        A(f"v_min_u32 v{vT}, v{vT}, v{vD+3}")
        A("s_nop 0")
        A(f"v_readfirstlane_b32 s6, v{vT}")
        A(f"s_cmp_ge_u32 s6, {val}")
        A(f"s_cbranch_scc0 L_ws{k}")
    def scales(ptrs, base):
        A(f"v_lshlrev_b32 v{vT}, 4, v3")
        A(f"v_lshl_add_u32 v{vT}, v2, 10, v{vT}")
        A("s_lshl_b32 s6, s5, 14")
        A("s_lshl_b32 s7, s4, 7")
        A("s_add_u32 s6, s6, s7")
        A("s_add_u32 s7, s6, 8192")
        A(f"s_mov_b32 s{ST+2}, {0 if nosc else 0x80000}")
        for k, ptr in enumerate(ptrs):
            A(f"s_mov_b32 m0, {base + k*2048}")
            A(f"s_mov_b32 s{ST}, s{ptr}")
            A(f"s_mov_b32 s{ST+1}, s{ptr+1}")
            A(f"buffer_load_dwordx4 v{vT}, {srd(ST)}, s6 offen lds")
            A("s_addk_i32 m0, 0x400")
            A("s_nop 0")
            A(f"buffer_load_dwordx4 v{vT}, {srd(ST)}, s7 offen lds")

    A("L_consumer:")
    A("s_sub_u32 s3, s3, 1                        ; w")
    A("s_mov_b32 s80, 0xffff0000")
    A(f"s_mov_b32 s81, {hex(f2u(128 ** -0.5 * math.log2(math.e)))}")
    A("s_lshl_b32 s14, s5, 12                     ; q / out byte offset of the head pair")
    A(f"v_lshlrev_b32 v{vOWS}, 4, v1")
    A(f"s_mov_b32 s{ST+3}, 0x00020000")
    A(f"s_mul_i32 s94, s5, {EPST}")
    A(f"s_add_u32 s94, s94, {WS_EP}")
    A("s_lshl_b32 s7, s3, 2")
    A(f"v_add_u32 v{vAD}, s7, v{vF}")
    A(f"v_mov_b32 v{vKZ}, 0")
    A(f"ds_write_b32 v{vAD}, v{vKZ}")
    A(f"ds_write_b32 v{vAD}, v{vKZ} offset:16")
    A("s_waitcnt lgkmcnt(0)")
    if latebar != 1:
        A("s_barrier")
    A(f"s_mov_b32 s{sEP}, 0" if noep else f"s_load_dword s{sEP}, s[42:43], s94")
    A("s_cmp_lg_u32 s3, 0")
    A("s_cbranch_scc1 L_notq")
    A(f"v_lshlrev_b32 v{vT}, 4, v3")
    A(f"v_lshl_add_u32 v{vT}, v2, 8, v{vT}          ; q*256 + e*16")
    A(f"s_mov_b32 s{ST}, s30")
    A(f"s_mov_b32 s{ST+1}, s31")
    A(f"s_mov_b32 s{ST+2}, {0 if noq else 2048}")
    A(f"buffer_load_dwordx4 {r(vR,4)}, v{vT}, {srd(ST)}, 0 offen")
    A(f"buffer_load_dwordx4 {r(vR+4,4)}, v{vT}, {srd(ST)}, 0 offen offset:128")
    A(f"s_mov_b32 s{ST}, s32")
    A(f"s_mov_b32 s{ST+1}, s33")
    A(f"buffer_load_dwordx4 {r(vR+8,4)}, v{vT}, {srd(ST)}, 0 offen")
    A(f"buffer_load_dwordx4 {r(vR+12,4)}, v{vT}, {srd(ST)}, 0 offen offset:128")
    A(f"s_mov_b32 s{ST}, s16")
    A(f"s_mov_b32 s{ST+1}, s17")
    A(f"s_mov_b32 s{ST+2}, {0 if noq else 131072}")
    for k in range(4):
        A(f"buffer_load_dwordx4 {r(vACC+4*k,4)}, v{vT}, {srd(ST)}, s14 offen offset:{(k >> 1)*2048 + (k & 1)*128}")
    A("s_branch L_roles")
    A("L_notq:")
    A("s_cmp_lg_u32 s3, 1")
    A("s_cbranch_scc1 L_notsc")
    scales((22, 20), LDS_SC)
    A("s_branch L_roles")
    A("L_notsc:")
    def l2pf_addr():
        A("s_lshr_b32 s6, s5, 2")
        A("s_lshl_b32 s6, s6, 3")
        A("s_add_u32 s6, s6, s4")
        A("s_lshl_b32 s6, s6, 14")
        A("s_and_b32 s7, s5, 3")
        A("s_lshl_b32 s7, s7, 12")
        A("s_add_u32 s6, s6, s7")
    def l2pf_vec(skip):
        A("s_cmp_lg_u32 s3, 2")
        A(f"s_cbranch_scc1 {skip}")
        l2pf_addr()
        A(f"v_lshlrev_b32 v{vT}, 7, v1")
        A(f"s_mov_b32 s{ST}, s34")
        A(f"s_mov_b32 s{ST+1}, s35")
        A(f"s_mov_b32 s{ST+2}, 0x100000")
        A("s_mov_b32 exec_hi, 0")
        A(f"buffer_load_dword v{vACC}, v{vT}, {srd(ST)}, s6 offen")
        A(f"s_mov_b32 s{ST}, s36")
        A(f"s_mov_b32 s{ST+1}, s37")
        A(f"buffer_load_dword v{vACC+1}, v{vT}, {srd(ST)}, s6 offen")
        A("s_mov_b64 exec, -1")
        A(f"{skip}:")
    if l2pf == 4:
        l2pf_vec("L_nopf")
    def touches():
        A("; first touch of pages that are needed later")
        A("s_lshl_b32 s6, s5, 22")
        A("s_add_u32 s7, s6, 0x200000")
        if touch == 1:
            A("s_load_dword s95, s[18:19], s7")
            A("s_load_dword s95, s[26:27], 0")
            A("s_load_dword s95, s[28:29], 0")
        A("s_load_dword s95, s[24:25], s6")
        A("s_load_dword s95, s[24:25], s7")
        A("s_load_dword s95, s[38:39], 0")
        A("s_load_dword s95, s[42:43], 0")
    if touch == 1:
        A("s_cmp_lg_u32 s3, 3")
        A("s_cbranch_scc1 L_roles")
        touches()
    A("L_roles:")
    if latebar == 1:
        A("s_barrier")
    A("v_bfe_u32 v5, v1, 1, 3")
    A(f"v_lshl_add_u32 v{vAKZ}, v5, 3, s3")
    A(f"v_lshlrev_b32 v{vAKZ}, 1, v{vAKZ}")
    A(f"v_add_u32 v{vAKZ}, {LDS_SC}, v{vAKZ}")
    A(f"v_lshl_add_u32 v{vAKS}, v2, 3, s3")
    A(f"v_lshlrev_b32 v{vAKS}, 1, v{vAKS}")
    A(f"v_add_u32 v{vAKS}, {LDS_SC + 2048}, v{vAKS}")
    A(f"v_lshrrev_b32 v{vT}, 4, v1")
    A(f"v_and_b32 v{vU}, 1, v1")
    A(f"v_lshl_add_u32 v{vT}, v{vT}, 1, v{vU}       ; e = 2g+a")
    A(f"v_and_b32 v{vU}, 4, v5")
    A(f"v_xor_b32 v{vU}, v{vU}, v{vT}")
    A(f"v_lshlrev_b32 v{vU}, 4, v{vU}")
    A(f"v_lshl_add_u32 v{vBCS}, v5, 7, v{vU}")
    A("s_lshl_b32 s7, s3, 11")
    A("s_add_u32 s7, s7, 0x4000")
    A(f"v_add_u32 v{vBCS}, s7, v{vBCS}")
    A("s_lshl_b32 s7, s3, 12")
    A(f"v_lshlrev_b32 v{vBK}, 10, v4               ; (g>>1)*1024")
    A(f"v_lshl_add_u32 v{vBK}, v5, 7, v{vBK}        ; + rho*128")
    A(f"v_and_b32 v{vT}, 3, v{vT}")
    A(f"v_lshl_add_u32 v{vBK}, v{vT}, 5, v{vBK}     ; + (e&3)*32")
    A(f"v_lshrrev_b32 v{vT}, 2, v5")
    A(f"v_lshl_add_u32 v{vBK}, v{vT}, 4, v{vBK}     ; + (rho>>2)*16")
    A(f"v_add_u32 v{vBK}, s7, v{vBK}")
    A("s_lshl_b32 s7, s3, 2")
    A(f"s_add_u32 s7, s7, {LDS_S}")
    A(f"v_add_u32 v{vASw}, s7, v{vOWS}")
    A(f"v_mov_b32 v{vKS}, 0")
    A(f"v_mov_b32 v{vM}, 0xff7fffff")
    A(f"v_mov_b32 v{vMB}, 0xff7fffff")
    A("s_mov_b32 s12, 1")
    A("s_mov_b32 s13, 0")
    A("s_mov_b32 s8, 0                            ; ring half offset")
    A("s_mov_b32 s9, 8")
    A("s_cmp_eq_u32 s3, 3")
    A(f"s_cselect_b32 s10, {3 * VSU + 1}, 0")
    if l2pf == 2 or l2pf == 3:
        A("s_cmp_lt_u32 s3, 2")
        A("s_cbranch_scc1 L_nopf")
        l2pf_addr()
        A("s_cmp_eq_u32 s3, 2")
        A("s_cselect_b32 s64, s34, s36")
        A("s_cselect_b32 s65, s35, s37")
        A("s_add_u32 s64, s64, s6")
        A("s_addc_u32 s65, s65, 0")
        step = 128 if l2pf == 2 else 64
        for k in range(4096 // step):
            A(f"s_load_dword s95, s[64:65], {k * step}")
        A("L_nopf:")
    A("s_cmp_lg_u32 s3, 0")
    A("s_cbranch_scc1 L_qdone")
    A("s_waitcnt vmcnt(4)")
    if sdiag:
        A("s_memrealtime s[56:57]")
    unpack(vC, vR, 16)
    A(f"v_lshl_add_u32 v{vT}, v3, 3, v2")
    A(f"v_lshlrev_b32 v{vT}, 4, v{vT}")
    A(f"v_add_u32 v{vT}, {LDS_Q}, v{vT}")
    for hb in range(2):
        A(f"s_waitcnt vmcnt({2 - 2*hb})")
        unpack(vX, vACC + 8 * hb, 8)
        rope(0, 8, vQ + 8 * hb)
        A(f"ds_write_b128 v{vT}, {r(vQ+8*hb,4)} offset:{2048*hb}")
        A(f"ds_write_b128 v{vT}, {r(vQ+8*hb+4,4)} offset:{2048*hb+1024}")
    A("L_qdone:")
    if sdiag:
        A("s_memrealtime s[58:59]")
    wg_sync(1)
    if sdiag:
        A("s_memrealtime s[60:61]")
        A("s_waitcnt lgkmcnt(0)")
    A(f"v_add_u32 v{vU}, {LDS_Q}, v{vOWS}")
    for k in range(4):
        A(f"ds_read_b128 {r(vQ+4*k,4)}, v{vU} offset:{k*1024}")
    if l2pf == 1:
        l2pf_vec("L_nopf")
    A("L_kunit:")
    A(f"v_add_u32 v{vAK0}, s8, v{vBK}")
    A(f"v_add_u32 v{vACS}, s8, v{vBCS}")
    A(f"v_xor_b32 v{vAK1}, 16, v{vAK0}")
    A("s_cmp_eq_u32 s12, s10")
    A("s_cbranch_scc1 L_vscales")
    A("L_kgo:")
    for hb in range(2):
        wait_landed()
        o = hb * 0x8000
        if hb == 0:
            for part in range(4):
                A(f"ds_read_b128 {r(vR+4*part,4)}, v{vACS} offset:{(part >> 1)*8192 + (part & 1)*1024}")
        A(f"ds_read_b128 {r(vX,4)}, v{vAK0} offset:{o}")
        A(f"ds_read_b128 {r(vX+8,4)}, v{vAK0} offset:{o+2048}")
        A(f"ds_read_u16_d16_hi v{vKZ}, v{vAKZ} offset:{hb*1024}")
        A(f"ds_read_b128 {r(vX+4,4)}, v{vAK1} offset:{o}")
        A(f"ds_read_b128 {r(vX+12,4)}, v{vAK1} offset:{o+2048}")
        A(f"ds_read_u16_d16_hi v{vKS}, v{vAKS} offset:{hb*1024}")
        if hb == 0:
            A("s_waitcnt lgkmcnt(8)")
            unpack(vC, vR, 8)
            A("s_waitcnt lgkmcnt(0)")
            set_done(1)
            unpack(vC + 16, vR + 8, 8)
        for part in range(2):
            if hb == 1:
                A(f"s_waitcnt lgkmcnt({3 if part == 0 else 0})")
                if part == 1:
                    set_done(2)
            for b in (vX + 4 * part, vX + 8 + 4 * part):
                for i in range(4):
                    A(f"v_cvt_f32_i32 v{b+i}, v{b+i}")
            for b in (vX + 4 * part, vX + 8 + 4 * part):
                for i in (0, 2):
                    A(f"v_pk_add_f32 {r(b+i,2)}, {r(b+i,2)}, {r(vKZ,2)} op_sel_hi:[1,0] neg_lo:[0,1] neg_hi:[0,1]")
            rope(4 * part, 4 * part + 4, vA)
        A(f"v_mul_f32 v{vU}, s81, v{vKS}")
        A("s_nop 0")
        A(f"v_mfma_f32_16x16x32_bf16 {r(vD,4)}, {r(vA,4)}, {r(vQ+8*hb,4)}, 0")
        A(f"v_mfma_f32_16x16x32_bf16 {r(vD,4)}, {r(vA+4,4)}, {r(vQ+8*hb+4,4)}, {r(vD,4)}")
        if hb:
            A(f"v_add_u32 v{vAKZ}, s9, v{vAKZ}")
            A(f"v_add_u32 v{vAKS}, s9, v{vAKS}")
            A(f"s_xor_b32 s9, s9, {8 ^ 120}")
            A("s_sub_u32 s8, 0xc000, s8")
            A("s_cmp_lt_u32 s12, 48")
            A("s_nop 2")
        else:
            A("s_nop 7")
        A(f"v_add_f32_dpp v{vS}, v{vD+1}, v{vD} row_ror:8 row_mask:0xf bank_mask:0x3")
        A(f"v_add_f32_dpp v{vS}, v{vD+2}, v{vD+3} row_ror:8 row_mask:0xf bank_mask:0xc")
        A(f"v_mul_f32 v{vS}, v{vS}, v{vU}")
        A(f"ds_write_b32 v{vASw}, v{vS} offset:{hb*16384}")
        A(f"v_max_f32 v{vMB if hb else vM}, v{vMB if hb else vM}, v{vS}")
    A(f"v_add_u32 v{vASw}, 1024, v{vASw}")
    A("s_cbranch_scc1 L_kunit")
    A("s_mov_b32 s12, 48")
    A(f"v_max_f32_dpp v{vM}, v{vM}, v{vM} row_ror:8 row_mask:0xf bank_mask:0xf")
    A(f"v_max_f32_dpp v{vMB}, v{vMB}, v{vMB} row_ror:8 row_mask:0xf bank_mask:0xf")
    A(f"v_mov_b32 v{vU}, v{vM}")
    A(f"v_mov_b32 v{vS}, v{vMB}")
    A("v_lshlrev_b32 v5, 4, v3")
    A(f"v_add_u32 v5, {LDS_MX}, v5")
    A(f"v_permlane16_swap_b32 v{vM}, v{vU}")
    A(f"v_permlane16_swap_b32 v{vMB}, v{vS}")
    A(f"v_max_f32 v{vM}, v{vM}, v{vU}")
    A(f"v_max_f32 v{vMB}, v{vMB}, v{vS}")
    A(f"v_mov_b32 v{vU}, v{vM}")
    A(f"v_mov_b32 v{vS}, v{vMB}")
    A("s_lshl_b32 s7, s3, 2")
    A(f"v_add_u32 v{vKZ}, s7, v5")
    A(f"v_permlane32_swap_b32 v{vM}, v{vU}")
    A(f"v_permlane32_swap_b32 v{vMB}, v{vS}")
    A(f"v_max_f32 v{vM}, v{vM}, v{vU}")
    A(f"v_max_f32 v{vMB}, v{vMB}, v{vS}")
    A(f"ds_write_b32 v{vKZ}, v{vM}")
    A(f"ds_write_b32 v{vKZ}, v{vMB} offset:128")
    A(f"v_lshlrev_b32 v{vBV}, 4, v4")
    A(f"v_xor_b32 v{vBV}, v{vBV}, v{vOWS}")
    A("s_lshl_b32 s7, s3, 10")
    A(f"v_add_u32 v{vBV}, s7, v{vBV}")
    A(f"v_add_u32 v{vASr}, {LDS_S}, v{vOWS}")
    A(f"v_lshlrev_b32 v{vAVS}, 4, v2")
    A(f"v_add_u32 v{vAVS}, {LDS_SC + 4096}, v{vAVS}")
    A(f"v_add_u32 v{vOML}, {WS_ML}, v{vOWS}")
    A("s_lshl_b32 s7, s3, 13")
    A(f"v_add_u32 v{vASw}, s7, v{vASr}")
    A("s_lshl_b32 s7, s3, 9")
    A(f"v_add_u32 v{vACS}, s7, v{vAVS}")
    A(f"v_bfe_u32 v{vQP}, v1, 3, 2")
    A(f"v_lshl_add_u32 v{vQP}, v{vQP}, 1, v4")
    A("s_lshl_b32 s7, s3, 7")
    A(f"v_lshl_add_u32 v{vU}, v3, 4, s7             ; w*128 + c*16")
    A(f"v_lshl_add_u32 v{vOWS}, v{vQP}, 9, v{vU}     ; publish offset q'*512 + w*128 + c*16")
    A(f"v_lshl_add_u32 v{vOG}, v{vQP}, 12, v{vU}     ; gather offset: lanes of row q' fetch member q'")
    A(f"v_cmp_ne_u32 s[62:63], s4, v{vQP}")
    A(f"v_bfe_u32 v{vOOUT}, v1, 4, 1")
    A(f"v_lshl_add_u32 v{vOOUT}, v{vOOUT}, 1, v4     ; j = 2*b4 + b5")
    A(f"v_lshrrev_b32 v{vU}, 1, v{vU}")
    A(f"v_lshl_add_u32 v{vOOUT}, v{vOOUT}, 1, v{vU}  ; w*64 + c*8 + j*2")
    A("s_lshl_b32 s7, s4, 8")
    A("s_add_u32 s14, s14, s7")
    A("s_lshl_b32 s66, s5, 16")
    A("s_lshl_b32 s7, s4, 9")
    A("s_add_u32 s66, s66, s7")
    A("s_add_u32 s67, s66, 0x8000")
    mksrd(SWS, 42, 0 if nostore else 0x210000)
    mksrd(SOUT, 38, 131072)
    A("s_lshl_b32 s10, s5, 4")
    A("s_or_b32 s10, s10, s4")
    A("s_lshl_b32 s10, s10, 12")
    A("s_add_u32 s15, s10, 0x8000")
    A(f"s_mul_i32 s{sEP}, s{sEP}, 0x9e3779b1")
    A(f"s_add_u32 s{sEP}, s{sEP}, 0x7f4a7c15")
    for i in range(4):
        A(f"s_bfe_u32 s{90+i}, s{sEP}, {hex((8 << 16) | (8 * i))}")
    A(f"v_mov_b32 v{vN}, 0xffffff00")
    A("s_mov_b32 s8, 0                            ; ring offset of the block")
    A(f"v_mov_b32 v{vL2}, 0")
    A(f"v_mov_b32 v{vL2+1}, 0")
    wg_sync(2)
    A(f"ds_read_b128 {r(vD,4)}, v5")
    A(f"ds_read_b128 {r(vA,4)}, v5 offset:128")
    A("s_cmp_ge_u32 s3, 2")
    A("s_cselect_b64 vcc, -1, 0")
    A("s_mov_b32 s9, 4")
    A("s_waitcnt lgkmcnt(0)")
    A(f"v_max3_f32 v{vMA}, v{vD}, v{vD+1}, v{vD+2}")
    A(f"v_max3_f32 v{vMA+1}, v{vA}, v{vA+1}, v{vA+2}")
    A(f"v_max_f32 v{vMA}, v{vMA}, v{vD+3}")
    A(f"v_max_f32 v{vMA+1}, v{vMA+1}, v{vA+3}")
    A(f"v_cndmask_b32 v{vM}, v{vMA}, v{vMA+1}, vcc")
    A("L_pblk:")
    A(f"ds_read_b128 {r(vP,4)}, v{vASw}")
    A(f"ds_read_b128 {r(vP+4,4)}, v{vASw} offset:1024")
    A(f"ds_read_b128 {r(vVS,4)}, v{vACS}")
    A(f"v_add_u32 v{vACS}, 128, v{vACS}")
    A("s_sub_u32 s9, s9, 1")
    A("s_cmp_lg_u32 s9, 0")
    A("s_waitcnt lgkmcnt(1)")
    for i in range(0, 8, 2):
        A(f"v_pk_add_f32 {r(vP+i,2)}, {r(vP+i,2)}, {r(vM,2)} op_sel_hi:[1,0] neg_lo:[0,1] neg_hi:[0,1]")
    for i in range(8):
        A(f"v_exp_f32 v{vP+i}, v{vP+i}")
    A("s_waitcnt lgkmcnt(0)")
    unpack(vVU, vVS, 4)
    for i in range(0, 8, 2):
        A(f"v_pk_mul_f32 {r(vVU+i,2)}, {r(vVU+i,2)}, {r(vP+i,2)}")
    for i in range(4):
        A(f"v_cvt_pk_bf16_f32 v{vPP+i}, v{vVU+2*i}, v{vVU+2*i+1}")
    A(f"ds_write_b128 v{vASw}, {r(vPP,4)}")
    for i in range(0, 8, 2):
        A(f"v_pk_add_f32 {r(vL2,2)}, {r(vL2,2)}, {r(vP+i,2)}")
    A(f"v_add_u32 v{vASw}, 2048, v{vASw}")
    A("s_cbranch_scc1 L_pblk")
    def fly(op, x, t, fill=()):
        A(f"v_{op}_f32_dpp v{x}, v{x}, v{x} row_ror:8 row_mask:0xf bank_mask:0xf")
        A(f"v_mov_b32 v{t}, v{x}")
        A("s_nop 1")
        A(f"v_permlane16_swap_b32 v{x}, v{t}")
        A(f"v_{op}_f32 v{x}, v{x}, v{t}")
        A(f"v_mov_b32 v{t}, v{x}")
        A("s_nop 1")
        A(f"v_permlane32_swap_b32 v{x}, v{t}")
        A(f"v_{op}_f32 v{x}, v{x}, v{t}")
    A(f"v_add_f32 v{vL}, v{vL2}, v{vL2+1}")
    A("s_and_b32 s7, s3, 2")
    A("s_lshl_b32 s6, s7, 2")
    fly("add", vL, vU)
    A(f"ds_write_b32 v{vKZ}, v{vL} offset:256")
    A("v_add_u32 v5, s6, v5")
    wg_sync(3)
    A("s_bitcmp1_b32 s3, 0")
    A("s_cbranch_scc1 L_vhead")
    A(f"ds_read_b64 {r(vL2,2)}, v5 offset:256")
    A("s_lshl_b32 s7, s7, 14")
    A("s_add_u32 s6, s10, s7")
    A("s_lshr_b32 s6, s6, 5")
    A("s_waitcnt lgkmcnt(0)")
    A(f"v_add_f32 v{vL}, v{vL2}, v{vL2+1}")
    A(f"v_mov_b32 v{vL2}, s{sEP}")
    A(f"v_mov_b32 v{vL2+1}, s{sEP}")
    A("s_mov_b64 exec, 0xff")
    A(f"buffer_store_dwordx4 {r(vM,4)}, v{vOML}, {srd(SWS)}, s6 offen sc1")
    A("s_mov_b64 exec, -1")
    def vcvt(ts):
        for t in ts:
            for j in range(4):
                A(f"v_cvt_f32_i32 v{vX+4*t+j}, v{vX+4*t+j}")
    def vpack(pr):
        for j in range(4):
            A(f"v_cvt_pk_bf16_f32 v{vA+2*j+pr}, v{vX+8*pr+j}, v{vX+8*pr+4+j}")
    def vstage(h):
        wait_landed()
        if h == 0 and stamps:
            A(f"ds_read_b32 v{vU}, v{vF} offset:36")
        for t in range(4):
            A(f"ds_read_b128 {r(vX+4*t,4)}, v{vAV} offset:{(4*h+t)*4096}")
        A("s_waitcnt lgkmcnt(2)")
        if h == 0:
            A(f"v_mfma_f32_16x16x32_bf16 {r(vCOR,4)}, {r(vPP,4)}, {r(vVZ,4)}, {r(vCOR,4)}")
        vcvt([0, 1])
        vpack(0)
        A("s_waitcnt lgkmcnt(0)")
        vcvt([2, 3])
        vpack(1)
        for j in range(4):
            A(f"v_mfma_f32_16x16x16_bf16 {r(vACC+4*j,4)}, {r(vPP+2*h,2)}, {r(vA+2*j,2)}, {r(vACC+4*j,4)}")
        set_done(1)
        if h == 0 and stamps:
            A(f"v_readfirstlane_b32 s9, v{vU}")
    A("L_vhead:")
    for i in range(20):
        A(f"v_mov_b32 v{vACC+i}, 0")
    A("L_vblk:")
    A(f"ds_read_b128 {r(vPP,4)}, v{vASr}")
    A(f"ds_read_b128 {r(vVZ,4)}, v{vAVS} offset:2048")
    A(f"v_add_u32 v{vASr}, 2048, v{vASr}")
    A(f"v_add_u32 v{vAVS}, 128, v{vAVS}")
    A(f"v_add_u32 v{vAV}, s8, v{vBV}")
    vstage(0)
    A(f"s_cmp_ge_u32 s12, {48 + 2 * FB + 1}")
    A("s_cbranch_scc1 L_hook")
    A("L_vmid:")
    vstage(1)
    A("s_add_u32 s8, s8, 0x8000")
    A(f"s_cmp_eq_u32 s8, {RING}")
    A("s_cselect_b32 s8, 0, s8")
    A("s_and_b32 s6, s12, 15")
    A("s_cbranch_scc1 L_vblk")
    A("L_fin:")
    for j in range(4):
        A(f"v_permlane32_swap_b32 v{vACC+4*j}, v{vACC+4*j+1}")
        A(f"v_permlane32_swap_b32 v{vACC+4*j+2}, v{vACC+4*j+3}")
    A("s_cmp_eq_u32 s12, 80")
    for j in range(4):
        A(f"v_add_f32_dpp v{vD+j}, v{vACC+4*j+1}, v{vACC+4*j} row_ror:8 row_mask:0xf bank_mask:0x3")
        A(f"v_add_f32_dpp v{vD+j}, v{vACC+4*j+2}, v{vACC+4*j+3} row_ror:8 row_mask:0xf bank_mask:0xc")
    A("s_cbranch_scc0 L_savea")
    for i in (0, 2):
        A(f"v_pk_mul_f32 {r(vD+i,2)}, {r(vD+i,2)}, {r(vMA,2)} op_sel:[0,1] op_sel_hi:[1,1]")
    for j in range(4):
        A(f"v_and_or_b32 v{vD+j}, v{vD+j}, v{vN}, s{90+j}")
    A("s_mov_b64 exec, s[62:63]")
    A(f"buffer_store_dwordx4 {r(vD,4)}, v{vOWS}, {srd(SWS)}, s15 offen sc1")
    if stamps:
        A("s_memrealtime s[60:61]")
    vZ, vXs, vTm = vO, [vO + 4, vO + 8], vO + 12
    def gather(dst, soff):
        A(f"buffer_load_dwordx4 {r(dst,4)}, v{vOG}, {srd(SWS)}, {soff} offen sc1")
    def check(src):
        for j in range(4):
            A(f"v_xor_b32 v{vTm+j}, s{90+j}, v{src+j}")
        A(f"v_or3_b32 v{vU}, v{vTm}, v{vTm+1}, v{vTm+2}")
        A(f"v_or_b32 v{vU}, v{vU}, v{vTm+3}")
        A(f"v_cmp_ne_u32_sdwa vcc, v{vU}, v{vS} src0_sel:BYTE_0 src1_sel:DWORD")
    def regather(dst, soff):
        if stamps:
            A("s_add_u32 s11, s11, 1")
        A("s_mov_b64 exec, vcc")
        gather(dst, soff)
        A("s_mov_b64 exec, -1")
        guard()
    def reduce_store(off):
        A(f"v_permlane32_swap_b32 v{vTm}, v{vTm+1}")
        A(f"v_permlane32_swap_b32 v{vTm+2}, v{vTm+3}")
        A(f"v_add_f32 v{vTm}, v{vTm}, v{vTm+1}")
        A(f"v_add_f32 v{vTm+2}, v{vTm+2}, v{vTm+3}")
        A("s_nop 1")
        A(f"v_permlane16_swap_b32 v{vTm}, v{vTm+2}")
        A(f"v_add_f32 v{vTm}, v{vTm}, v{vTm+2}")
        A("s_nop 1")
        A(f"v_add_f32_dpp v{vTm}, v{vTm}, v{vTm} row_ror:8 row_mask:0xf bank_mask:0xf")
        A(f"v_cvt_pk_bf16_f32 v{vU}, v{vTm}, v{vTm}")
        A("s_mov_b64 exec, s[64:65]")
        A(f"buffer_store_short v{vU}, v{vOOUT}, {srd(SOUT)}, s14 offen offset:{off} {outfl}")
    if GP == 0:
        gather(vZ, "s66")
        gather(vXs[0], "s67")
    A("s_not_b64 exec, exec")
    if GP == 0:
        A("s_waitcnt vmcnt(0)")
    else:
        A("s_waitcnt vmcnt(1)")
    for j in range(4):
        A(f"v_mov_b32 v{vZ+j}, v{vDA+j}")
        A(f"v_mov_b32 v{vXs[0]+j}, v{vD+j}")
    A("s_mov_b64 exec, -1")
    check(vXs[0])
    if not nostore:
        A("s_cbranch_vccz L_bok")
        regather(vXs[0], "s67")
        A("s_branch L_cha")
    A("L_bok:")
    reduce_store(2048)
    A("s_mov_b64 exec, -1")
    A("s_mov_b32 s67, 0")
    A("L_cha:")
    check(vZ)
    if not nostore:
        A("s_cbranch_vccnz L_rea")
    reduce_store(0)
    A("s_mov_b64 exec, -1")
    A("s_cmp_eq_u32 s67, 0")
    A("s_cbranch_scc1 " + ("L_stamp" if stamps else "L_end"))
    A("s_waitcnt vmcnt(1)")
    A("L_chb:")
    check(vXs[0])
    A("s_cbranch_vccz L_sumb")
    regather(vXs[0], "s67")
    A("s_waitcnt vmcnt(0)")
    A("s_branch L_chb")
    A("L_sumb:")
    reduce_store(2048)
    A("s_branch L_stamp" if stamps else "s_endpgm")
    A("L_rea:")
    regather(vZ, "s66")
    A("s_waitcnt vmcnt(0)")
    A("s_branch L_cha")
    A("L_savea:")
    for i in (0, 2):
        A(f"v_pk_mul_f32 {r(vDA+i,2)}, {r(vD+i,2)}, {r(vMA,2)} op_sel_hi:[1,0]")
    for j in range(4):
        A(f"v_and_or_b32 v{vDA+j}, v{vDA+j}, v{vN}, s{90+j}")
    A("s_branch L_vhead")
    A("L_vscales:")
    scales((26, 28), LDS_SC + 4096)
    if touch == 2:
        touches()
        A("s_waitcnt lgkmcnt(0)")
    A("s_branch L_kgo")
    A("L_hook:")
    A(f"s_cmp_lg_u32 s12, {48 + 2 * FB + 1}")
    A("s_cbranch_scc1 L_h1")
    A("L_mlload:")
    A("s_lshl_b32 s6, s5, 11")
    A(f"v_lshlrev_b32 v{vU}, 4, v{vQP}")
    A(f"v_lshl_add_u32 v{vU}, v3, 7, v{vU}")
    A(f"v_add_u32 v{vU}, {WS_ML}, v{vU}")
    A(f"buffer_load_dwordx3 {r(vML,3)}, v{vU}, {srd(SWS)}, s6 offen sc1")
    A(f"buffer_load_dwordx3 {r(vML+4,3)}, v{vU}, {srd(SWS)}, s6 offen offset:1024 sc1")
    A("L_h1:")
    A(f"s_cmp_lg_u32 s12, {48 + 2 * (FB + 1) + 1}")
    A("s_cbranch_scc1 L_h2")
    A("; normalisation factors exp2(m - M) / L of both heads from the statistics of all members")
    A(f"v_lshlrev_b32 v{vU}, 4, v{vQP}")
    A(f"v_add_u32 v{vU}, {LDS_MX}, v{vU}")
    A(f"ds_read_b128 {r(vD,4)}, v{vU}")
    A(f"ds_read_b128 {r(vO,4)}, v{vU} offset:128")
    guard()
    A("s_waitcnt vmcnt(0) lgkmcnt(0)")
    A(f"v_xor_b32 v{vU}, s{sEP}, v{vML+2}")
    A(f"v_xor_b32 v{vS}, s{sEP}, v{vML+6}")
    A(f"v_or_b32 v{vU}, v{vU}, v{vS}")
    A(f"v_cmp_ne_u32 vcc, 0, v{vU}")
    if not nostore:
        A("s_cbranch_vccnz L_mlload")
    A(f"v_max3_f32 v{vMA}, v{vD}, v{vD+1}, v{vD+2}")
    A(f"v_max3_f32 v{vMA+1}, v{vO}, v{vO+1}, v{vO+2}")
    A(f"v_max_f32 v{vMA}, v{vMA}, v{vD+3}")
    A(f"v_max_f32 v{vMA+1}, v{vMA+1}, v{vO+3}")
    def fly8(op, dst, src):
        for k, ctl in enumerate(("quad_perm:[1,0,3,2]", "quad_perm:[2,3,0,1]", "row_half_mirror")):
            for hb in range(2):
                x = src[hb] if k == 0 else dst[hb]
                A(f"v_{op}_f32_dpp v{dst[hb]}, v{x}, v{x} {ctl} row_mask:0xf bank_mask:0xf")
            A("s_nop 0")
    fly8("max", (vU, vS), (vML, vML + 4))
    for hb, t in enumerate((vU, vS)):
        A(f"v_sub_f32 v{vML+4*hb}, v{vML+4*hb}, v{t}")
        A(f"v_sub_f32 v{vMA+hb}, v{vMA+hb}, v{t}")
    for hb in range(2):
        A(f"v_exp_f32 v{vML+4*hb}, v{vML+4*hb}")
    for hb in range(2):
        A(f"v_exp_f32 v{vMA+hb}, v{vMA+hb}")
    for hb in range(2):
        A(f"v_mul_f32 v{vML+4*hb}, v{vML+4*hb}, v{vML+4*hb+1}")
    A("s_nop 0")
    fly8("add", (vU, vS), (vML, vML + 4))
    A(f"v_rcp_f32 v{vU}, v{vU}")
    A(f"v_rcp_f32 v{vS}, v{vS}")
    A(f"v_mul_f32 v{vMA}, v{vMA}, v{vU}")
    A(f"v_mul_f32 v{vMA+1}, v{vMA+1}, v{vS}")
    A("L_h2:")
    A(f"s_cmp_lg_u32 s12, {48 + 2 * PA + 1}")
    A("s_cbranch_scc1 L_h3")
    A("s_mov_b64 exec, s[62:63]")
    A(f"buffer_store_dwordx4 {r(vDA,4)}, v{vOWS}, {srd(SWS)}, s10 offen sc1")
    A("s_mov_b64 exec, -1")
    A("L_h3:")
    A("s_and_b32 s6, s12, 15")
    A("s_cmp_lg_u32 s6, 15")
    A("s_cbranch_scc1 L_vmid")
    A("; last block of a head: take the zero-point term out now")
    for i in range(0, 16, 2):
        A(f"v_pk_add_f32 {r(vACC+i,2)}, {r(vACC+i,2)}, {r(vCOR+(i&2),2)} neg_lo:[0,1] neg_hi:[0,1]")
    A("s_cmp_lg_u32 s12, 79")
    A("s_cbranch_scc1 L_vmid")
    A("s_mov_b32 s64, 0x00ff00ff")
    A("s_mov_b32 s65, 0x00ff00ff")
    A("s_mov_b32 s12, 80")
    A(f"v_mov_b32 v{vS}, 0")
    if stamps:
        A("s_mov_b32 s11, 0")
    A("s_barrier")
    for t in (0, 1):
        A(f"ds_read_b128 {r(vX+4*t,4)}, v{vAV} offset:{(4+t)*4096}")
    A("s_waitcnt lgkmcnt(0)")
    vcvt([0, 1])
    vpack(0)
    A("s_barrier")
    for t in (2, 3):
        A(f"ds_read_b128 {r(vX+4*t,4)}, v{vAV} offset:{(4+t)*4096}")
    if GP == 1:
        A("s_mov_b64 exec, s[62:63]")
        gather(vZ, "s66")
        gather(vXs[0], "s67")
        A("s_mov_b64 exec, -1")
    A("s_waitcnt lgkmcnt(1)")
    vcvt([2])
    A("s_waitcnt lgkmcnt(0)")
    vcvt([3])
    vpack(1)
    for j in range(4):
        A(f"v_mfma_f32_16x16x16_bf16 {r(vACC+4*j,4)}, {r(vPP+2,2)}, {r(vA+2*j,2)}, {r(vACC+4*j,4)}")
    A("s_nop 3")
    A("s_branch L_fin")
    if stamps:
        A("L_stamp:")
        if not cst:
            A("s_memrealtime s[58:59]")
            A("s_waitcnt vmcnt(0)")
        A("s_memrealtime s[86:87]")
        A("s_getreg_b32 s88, hwreg(HW_REG_XCC_ID)")
        A("s_lshl_b32 s7, s9, 8")
        A("s_or_b32 s88, s88, s7")
        A("s_waitcnt lgkmcnt(0)")
        A("s_mov_b64 exec, 1")
        A("v_mov_b32 v8, s84")
        A("v_mov_b32 v9, s85")
        A("v_mov_b32 v10, s86")
        A("v_mov_b32 v11, s87")
        A("v_mov_b32 v12, s88")
        A("v_mov_b32 v13, s11")
        A("s_lshl_b32 s89, s2, 2")
        A("s_or_b32 s89, s89, s3")
        A("s_lshl_b32 s89, s89, 5")
        A("s_add_u32 s89, s89, 0x400000")
        A("v_mov_b32 v2, 0")
        A(f"s_mov_b32 s{SWS+2}, 0x800000")
        A(f"buffer_store_dwordx4 v[8:11], v2, {srd(SWS)}, s89 offen")
        A("v_mov_b32 v14, s58")
        A("v_mov_b32 v15, s60")
        A(f"buffer_store_dwordx4 v[12:15], v2, {srd(SWS)}, s89 offen offset:16")
        if sdiag:
            A("v_mov_b32 v8, s56")
            A("v_mov_b32 v9, s58")
            A("v_mov_b32 v10, s60")
            A("s_add_u32 s89, s89, 0x200000")
            A(f"buffer_store_dwordx4 v[8:11], v2, {srd(SWS)}, s89 offen")
    A("L_end:")
    A("s_endpgm")
    A('.section .rodata,"a"')
    A(".p2align 6")
    A(f".amdhsa_kernel {KNAME}")
    A(f"  .amdhsa_next_free_vgpr {NV}")
    A("  .amdhsa_next_free_sgpr 96")
    A(f"  .amdhsa_accum_offset {NV}")
    A("  .amdhsa_group_segment_fixed_size 0")
    A("  .amdhsa_kernarg_size 112")
    A("  .amdhsa_user_sgpr_count 2")
    A("  .amdhsa_user_sgpr_kernarg_segment_ptr 1")
    A("  .amdhsa_system_sgpr_workgroup_id_x 1")
    A("  .amdhsa_float_denorm_mode_32 3")
    A(".end_amdhsa_kernel")
    return "\n".join(L) + "\n"

if __name__ == "__main__":
    kw = eval("dict(" + (sys.argv[2] if len(sys.argv) > 2 else "") + ")")
    open(sys.argv[1], "w").write(gen(**kw))
```

```python
import sys, math, struct
KNAME = "standalone__kv_cache_quant_pre_rope_vs_post_rope__sampling_kernel"
HEADER = open("standalone__kv_cache_quant_pre_rope_vs_post_rope__sampling.s.ref").read().split("; Override launch")[0]

def f2u(x):
    return struct.unpack("<I", struct.pack("<f", x))[0]

def gen(DK=40, DW0=20, TS=70, RM=(16, 18, 20, 22, 24, 28, 28, 28), CP=(), SET=(), LAG=2, levels=(28, 24, 22, 20, 18, 16),
        VSU=15, FB=4, F0=0, PC=None, clk=False, touch=0, NSET=1, SLP=4, ROT=1, xfl='sc1', EARLY=1, HM=8, HV=None, l2pf=1, spin=1 << 22, outfl="", first=0,
        stamps=False, align=False, probe=None, nostore=False, static=False):
    cst = stamps
    stamps = stamps or align
    assert 17 <= DK <= 48 and TS <= 79 and TS >= 58 + 2 * FB
    nt = "nt"
    L = []
    def A(s=""):
        L.append(s if (s.endswith(":") or s.startswith(".") or s.startswith(";")) else "    " + s)
    RING = 0x18000
    LDS_S = RING
    LDS_SC = LDS_S + 0x8000
    LDS_Q = LDS_SC + 0x2000
    LDS_MX = LDS_Q + 4096
    LDS_F = LDS_MX + 448
    lds = LDS_F + 64
    WS_ML = 0x200000
    WS_EP = 0x210000
    EPST = 4096 + 256
    L.append(HEADER.rstrip())
    A(f"; @launch grid=(256,1,1) block=(320,1,1) lds={lds}")
    A("; The epoch word doubles as an arrival counter that sets how many loads a workgroup keeps in flight.")
    A('.amdgcn_target "amdgcn-amd-amdhsa--gfx950"')
    A(".text")
    A(f".globl {KNAME}")
    A(".p2align 8")
    A(f".type {KNAME},@function")
    A(f"{KNAME}:")
    A("s_cmp_ge_u32 s2, 256")
    A("s_cbranch_scc1 L_end")
    if align:
        A("s_load_dwordx2 s[40:41], s[0:1], 96")
        A("s_memrealtime s[84:85]")
        A("v_readfirstlane_b32 s3, v0")
        A("s_waitcnt lgkmcnt(0)")
        A("s_cmp_lg_u32 s3, 0")
        A("s_cbranch_scc1 L_al2")
        A("s_add_u32 s86, s84, 800")
        A("s_mov_b32 s88, s86")
        A("s_mov_b32 s87, 0")
        A("s_atomic_cmpswap s[86:87], s[40:41], 0xf0 glc")
        A("s_waitcnt lgkmcnt(0)")
        A("s_cmp_eq_u32 s86, 0")
        A("s_cselect_b32 s86, s88, s86")
        A("L_al1:")
        A("s_memrealtime s[84:85]")
        A("s_waitcnt lgkmcnt(0)")
        A("s_sub_u32 s87, s84, s86")
        A("s_cmp_lt_i32 s87, 0")
        A("s_cbranch_scc1 L_al1")
        A("L_al2:")
        A("s_barrier")
    if stamps or probe:
        A("s_memrealtime s[84:85]")
    A("s_load_dwordx16 s[16:31], s[0:1], 0")
    A("s_load_dwordx8 s[32:39], s[0:1], 64")
    A("s_load_dwordx2 s[42:43], s[0:1], 104")
    A("v_lshrrev_b32 v2, 6, v0")
    A("v_and_b32 v1, 63, v0")
    A("v_readfirstlane_b32 s3, v2")
    A("s_and_b32 s4, s2, 7                        ; member m")
    A("s_lshr_b32 s5, s2, 3                       ; group g")
    if HM == 8:
        A("s_and_b32 s57, s5, 1                       ; odd groups take the two halves of a block in reverse order")
    else:
        A(f"s_and_b32 s57, s2, {HM}")
        A("s_bcnt1_i32_b32 s57, s57")
        A("s_and_b32 s57, s57, 1                      ; half of the workgroups take the two halves of a block in reverse order")
    A(f"s_mul_i32 s56, s5, {EPST}")
    A(f"s_add_u32 s56, s56, {WS_EP}")
    A("v_lshrrev_b32 v2, 3, v1                    ; lane>>3")
    A("v_and_b32 v3, 7, v1                        ; lane&7")
    A("v_lshrrev_b32 v4, 5, v1                    ; lane>>5")
    A(f"v_mov_b32 v23, {LDS_F}")
    A("s_mov_b32 s83, 0")
    A("s_cmp_lg_u32 s3, 0")
    A("s_cbranch_scc1 L_consumer")
    def guard():
        A("s_add_u32 s83, s83, 1")
        A(f"s_cmp_gt_u32 s83, {spin}")
        A("s_cbranch_scc1 L_end")
    A("s_setprio 3")
    A("v_mov_b32 v6, 0")
    A("v_mov_b32 v7, 0")
    A("v_mov_b32 v17, 0")
    A("ds_write_b64 v23, v[6:7] offset:32")
    A("v_xor_b32 v5, v3, v4")
    A("v_lshlrev_b32 v5, 4, v5")
    A("v_lshl_add_u32 v10, v2, 12, v5")
    A("v_lshlrev_b32 v5, 2, v4")
    A("v_xor_b32 v5, v5, v3")
    A("v_lshlrev_b32 v5, 4, v5")
    A("v_lshl_add_u32 v11, v2, 11, v5")
    A("s_lshl_b32 s7, s5, 22")
    A("s_lshl_b32 s6, s4, 15")
    A("s_add_u32 s7, s7, s6                       ; g*4M + m*32K")
    A("s_sub_u32 s10, 0x400000, s6")
    A("s_mov_b32 s11, 0x00020000")
    A("s_lshr_b32 s6, s6, 1")
    A("s_sub_u32 s14, 0x100000, s6")
    A("s_mov_b32 s15, 0x00020000")
    A("s_mov_b32 s62, s14")
    A("s_mov_b32 s63, 0x00020000")
    A("s_lshl_b32 s44, s57, 11                    ; unit byte offset in the tensor")
    A("s_lshl_b32 s45, s57, 12")
    A("s_sub_u32 s45, 2048, s45")
    A("s_mov_b32 s46, 0")
    A("s_mov_b32 s47, 0")
    A("s_mov_b32 s48, 0                           ; ring offset")
    if cst:
        A("s_mov_b32 s79, 0")
        A("s_mov_b32 s50, 0")
    for i in range(12, 16):
        A(f"v_mov_b32 v{i}, 0")
    A("s_waitcnt lgkmcnt(0)")
    A("s_add_u32 s8, s18, s7")
    A("s_addc_u32 s9, s19, 0")
    A("s_add_u32 s12, s34, s6")
    A("s_addc_u32 s13, s35, 0")
    A("s_add_u32 s60, s36, s6")
    A("s_addc_u32 s61, s37, 0")
    def take(k):
        A(f"s_mov_b32 s{64+k}, 1")
        A(f"s_add_u32 s6, s56, {4*k}")
        A(f"s_atomic_add s{64+k}, s[42:43], s6 glc")
    def apply(k, mp):
        val = 0
        for j, d in enumerate(mp):
            assert d in levels
            val |= d << (8 * j)
        A("s_waitcnt lgkmcnt(0)")
        A(f"s_sub_u32 s6, s{64+k}, s{72+k}")
        A("s_and_b32 s6, s6, 7")
        A("s_lshl_b32 s6, s6, 3")
        A(f"s_mov_b32 s68, {hex(val & 0xffffffff)}")
        A(f"s_mov_b32 s69, {hex(val >> 32)}")
        A("s_lshr_b64 s[68:69], s[68:69], s6")
        A("s_and_b32 s77, s68, 0xff")
    cnt = [0]
    def stamp():
        if probe:
            A(f"s_cmp_lg_u32 s47, {probe[0]}")
            A(f"s_cbranch_scc1 L_pr{cnt[0]}")
            A("s_memrealtime s[70:71]")
            A(f"L_pr{cnt[0]}:")
            cnt[0] += 1
        if cst:
            flush()
            A("s_memrealtime s[50:51]")
            A("s_mov_b32 s79, s47")
    def flush():
        A("s_lshl_b64 exec, 1, s79")
        A("s_cmp_lt_u32 s79, 64")
        A(f"s_cbranch_scc0 L_st{cnt[0]}")
        A("v_mov_b32 v8, s50")
        A(f"s_branch L_su{cnt[0]}")
        A(f"L_st{cnt[0]}:")
        A("v_mov_b32 v9, s50")
        A(f"L_su{cnt[0]}:")
        A("s_mov_b64 exec, -1")
        cnt[0] += 1
    def publish():
        stamp()
        A("v_mov_b32 v6, s47")
        A("ds_write_b32 v23, v6 offset:32")
    stalls = []
    def free_check(name):
        A("v_min3_u32 v7, v12, v13, v14")
        A("v_min_u32 v7, v7, v15")
        A("s_sub_u32 s52, s46, 5")
        A("v_readfirstlane_b32 s53, v7")
        A("s_mov_b32 m0, s48")
        A("s_cmp_lt_i32 s53, s52")
        A(f"s_cbranch_scc1 L_{name}_full")
        stalls.append(name)
    seq = [("c", 8 + i) for i in range(8)] + [("k", i) for i in range(16)] + [("c", i) for i in range(8)] + [("k", 16 + i) for i in range(16)]
    if first == 1:
        seq = [("k", i) for i in range(8)] + [("c", 8 + i) for i in range(8)] + [("k", 8 + i) for i in range(8)] + [("c", i) for i in range(8)] + [("k", 16 + i) for i in range(16)]
    for bi, name in enumerate(("k0", "k1", "k2")):
        A(f"L_{name}:")
        if bi == 0:
            A("s_lshr_b32 s49, s44, 1")
            A("s_add_u32 s54, s44, 0x200000")
        free_check(name)
        for p in range(16):
            ty, ix = seq[bi * 16 + p]
            if ty == "k":
                lo = (0 if ix < 16 else 0x8000) + (ix & 15) * 896
            else:
                lo = 0x4000 + (ix >> 3) * 8192 + (ix & 7) * 896
            if p and seq[bi * 16 + p - 1] == (ty, ix - 1) and (ix & (15 if ty == "k" else 7)):
                A("s_addk_i32 m0, 0x380")
            elif lo != bi * 0x4000 or p:
                A(f"s_add_u32 m0, s48, {hex((lo - bi * 0x4000) & 0xffffffff)}")
            A(f"s_waitcnt vmcnt({DK-1})")
            if p == (DK - 17) % 16:
                if DK > 32:
                    A("s_sub_u32 s47, s47, 1")
                    A("s_max_i32 s47, s47, 0")
                publish()
            if p == 13:
                A("ds_read_b128 v[12:15], v23")
            if ty == "k":
                A(f"buffer_load_dwordx4 v10, s[8:11], {'s44' if ix < 16 else 's54'} offen offset:{128*(ix&15)} {nt} lds")
            else:
                A(f"buffer_load_dwordx4 v11, {'s[12:15]' if ix < 8 else 's[60:63]'}, s49 offen offset:{128*(ix&7)} lds")
        A("s_mov_b32 s47, s46")
        A("s_add_u32 s46, s46, 1")
        A("s_add_u32 s48, s48, 0x4000")
        if bi == 0:
            A("s_cmp_lg_u32 s46, 1")
            A("s_cbranch_scc1 L_k1")
            A("s_barrier")
            A("s_load_dwordx4 s[72:75], s[42:43], s56")
    A(f"s_cmp_eq_u32 s48, {RING}")
    A("s_cselect_b32 s48, 0, s48")
    A("s_add_u32 s44, s44, s45")
    A("s_sub_u32 s45, 0x40000, s45")
    A("s_cmp_lt_u32 s46, 48")
    A("s_cbranch_scc1 L_k0")
    A("s_add_u32 s8, s24, s7")
    A("s_addc_u32 s9, s25, 0")
    def rehalf():
        if HV is not None:
            A(f"s_and_b32 s57, s2, {HV}")
            A("s_bcnt1_i32_b32 s57, s57")
            A("s_and_b32 s57, s57, 1")
    rehalf()
    if HV is not None:
        A("s_lshl_b32 s45, s57, 12")
        A("s_sub_u32 s45, 2048, s45")
    A("s_lshl_b32 s44, s57, 11")
    A("s_mov_b32 s54, s44")
    A(f"s_mov_b32 s47, {45 if DK > 32 else 46}")
    events = sorted([(t, "take", k + 1, None) for k, (t, _) in enumerate(CP)] + [(t + LAG, "apply", k + 1, mp) for k, (t, mp) in enumerate(CP)]
                    + [(TS, "take", 0, None)] + ([(TS + LAG, "apply", 0, RM)] if RM else []) + [(t, "set", 0, d) for t, d in SET])
    times = sorted(set(e[0] for e in events)) + [80]
    assert times[0] > 48 and times[-2] < 80 and len(CP) <= 3
    A(f"s_mov_b32 s55, {times[0]}")
    A(f"s_mov_b32 s77, {DW0}")
    A("s_mov_b32 s59, 768")
    A("s_waitcnt lgkmcnt(0)")
    A("L_v:")
    A("v_readfirstlane_b32 s6, v17")
    A("s_and_b32 s58, s6, 0xff")
    A("s_lshr_b32 s6, s6, 8")
    A("s_cmp_lt_u32 s46, s6")
    A("s_cselect_b32 s58, s58, s77")
    free_check("v")
    A("L_vg:")
    for lv in levels[:-1]:
        A(f"s_waitcnt vmcnt({lv})")
        A(f"s_cmp_ge_u32 s58, {lv}")
        A("s_cbranch_scc1 L_vw")
    A(f"s_waitcnt vmcnt({levels[-1]})")
    A("L_vw:")
    A(f"buffer_load_dwordx4 v10, s[8:11], s54 offen {nt} lds")
    A("s_addk_i32 m0, 0x380")
    A("s_sub_u32 s53, s59, s58")
    A(f"buffer_load_dwordx4 v10, s[8:11], s54 offen offset:128 {nt} lds")
    A("s_addk_i32 m0, 0x380")
    A("s_lshr_b32 s53, s53, 4")
    A(f"buffer_load_dwordx4 v10, s[8:11], s54 offen offset:256 {nt} lds")
    A("s_addk_i32 m0, 0x380")
    A("s_add_u32 s59, s59, 4")
    A(f"buffer_load_dwordx4 v10, s[8:11], s54 offen offset:384 {nt} lds")
    A(f"s_addk_i32 m0, {hex(4096 - 3 * 896)}")
    A("s_add_u32 s54, s54, 512")
    A("s_cmp_le_u32 s53, s47")
    A("s_cbranch_scc1 L_vnp")
    A("s_mov_b32 s47, s53")
    publish()
    A("L_vnp:")
    A("ds_read_b128 v[12:15], v23")
    A("ds_read_b32 v17, v23 offset:36")
    A("s_and_b32 s53, s59, 15")
    A("s_cbranch_scc1 L_vg")
    A("s_add_u32 s46, s46, 1")
    A("s_add_u32 s48, s48, 0x4000")
    A(f"s_cmp_eq_u32 s48, {RING}")
    A("s_cselect_b32 s48, 0, s48")
    A("s_add_u32 s54, s44, 0x200000")
    A("s_bitcmp1_b32 s46, 0")
    A("s_cbranch_scc1 L_vb")
    A("s_add_u32 s44, s44, s45")
    A("s_sub_u32 s45, 0x40000, s45")
    A("s_mov_b32 s54, s44")
    A("L_vb:")
    A("s_cmp_lg_u32 s46, s55")
    A("s_cbranch_scc1 L_v")
    for i, t in enumerate(times[:-1]):
        A(f"s_cmp_lg_u32 s46, {t}")
        A(f"s_cbranch_scc1 L_ev{i}")
        for (tt, kind, k, mp) in [e for e in events if e[0] == t and e[1] != "take"] + [e for e in events if e[0] == t and e[1] == "take"]:
            if kind == "take":
                if static:
                    A(f"s_add_u32 s{64+k}, s{72+k}, s4")
                else:
                    take(k)
            elif kind == "set":
                A(f"s_mov_b32 s77, {mp}")
            else:
                apply(k, mp)
        A(f"s_mov_b32 s55, {times[i+1]}")
        A("s_branch L_v")
        A(f"L_ev{i}:")
    if stamps:
        A("s_waitcnt lgkmcnt(0)")
        A("s_sub_u32 s57, s64, s72")
        A("v_mov_b32 v16, s57")
        A("ds_write_b32 v23, v16 offset:40")
    A("s_mov_b32 s47, 79")
    A("s_waitcnt vmcnt(16)")
    publish()
    A("s_mov_b32 s47, 80")
    A("s_waitcnt vmcnt(8)")
    A("s_barrier")
    A("s_waitcnt vmcnt(0)")
    stamp()
    if align and not cst:
        A("s_memrealtime s[50:51]")
    A("s_barrier")
    if stamps:
        A("s_mov_b32 s60, s42")
        A("s_mov_b32 s61, s43")
        A("s_mov_b32 s62, 0x800000")
        A("s_mov_b32 s63, 0x00020000")
    if align and not cst:
        A("s_lshl_b32 s55, s2, 2")
        A("s_add_u32 s55, s55, 0x500000")
        A("v_mov_b32 v2, 0")
        A("s_waitcnt lgkmcnt(0)")
        A("v_mov_b32 v8, s50")
        A("s_mov_b64 exec, 1")
        A("buffer_store_dword v8, v2, s[60:63], s55 offen")
    if cst:
        A("s_waitcnt lgkmcnt(0)")
        flush()
        A("s_lshl_b32 s55, s2, 10")
        A("s_add_u32 s55, s55, 0x500000")
        A("v_lshlrev_b32 v2, 2, v1")
        A("buffer_store_dword v8, v2, s[60:63], s55 offen")
        A("buffer_store_dword v9, v2, s[60:63], s55 offen offset:256")
        A("v_mov_b32 v10, s83")
        A("buffer_store_dword v10, v2, s[60:63], s55 offen offset:512")
    if probe:
        X, wg, G, base = probe
        if wg is not None:
            A(f"s_cmp_lg_u32 s2, {wg}")
            A("s_cbranch_scc1 L_end")
        A("s_waitcnt lgkmcnt(0)")
        A("s_sub_u32 s70, s70, s84")
        A(f"s_sub_u32 s70, s70, {base}")
        A(f"s_mul_i32 s70, s70, {G}")
        A("s_add_u32 s70, s70, 6000")
        A("s_min_u32 s70, s70, 30000")
        A("L_spin:")
        A("s_memrealtime s[86:87]")
        A("s_waitcnt lgkmcnt(0)")
        A("s_sub_u32 s86, s86, s84")
        A("s_cmp_lt_u32 s86, s70")
        A("s_cbranch_scc1 L_spin")
    A("s_endpgm")
    for name in stalls:
        A(f"L_{name}_full:")
        A("ds_read_b128 v[12:15], v23")
        guard()
        A("s_waitcnt lgkmcnt(0)")
        A(f"s_branch L_{name}")
    vBK, vAK0, vAK1, vBCS, vACS, vASw, vAKZ, vAKS, vOWS, vOML, vOOUT, vAD = range(6, 18)
    vBV, vAV, vASr, vAVS = vBK, vAK0, vAK1, vAKS
    vM, vL, vL2, vT, vF = 18, 19, 20, 22, 23
    vMB = 21
    vKZ, vKS, vU, vS = 24, 25, 26, 27
    vD = 28; vQ = 32; vA = 48; vX = 56
    vR = 72; vC = 88; vW = 120
    vP = 72; vPP = 80; vVS = 84; vVZ = 32; vVU = 36; vQP = 44; vN = 45; vOG = 46
    vACC = [88, 108]
    vDA = 72; vZ = 76; vY = 84; vTm = 36; vML = 72; vMA = 40
    vQL = 136
    NV = 152
    SWS, SOUT, ST = 68, 72, 76
    sEP = 82
    def r(a, n):
        return f"v[{a}:{a+n-1}]"
    def srd(s):
        return f"s[{s}:{s+3}]"
    def mksrd(s, ptr, size):
        A(f"s_mov_b32 s{s}, s{ptr}")
        A(f"s_mov_b32 s{s+1}, s{ptr+1}")
        A(f"s_mov_b32 s{s+2}, {size}")
        A(f"s_mov_b32 s{s+3}, 0x00020000")
    def unpack(dst, src, n):
        for i in range(n):
            A(f"v_lshlrev_b32 v{dst+2*i}, 16, v{src+i}")
            A(f"v_and_b32 v{dst+2*i+1}, s80, v{src+i}")
    def rope(i0, i1, dst):
        Clo, Chi, Slo, Shi = vC, vC + 8, vC + 16, vC + 24
        for i in range(i0, i1, 2):
            A(f"v_pk_mul_f32 {r(vW+i,2)}, {r(vX+i,2)}, {r(Clo+i,2)}")
            A(f"v_pk_mul_f32 {r(vW+8+i,2)}, {r(vX+8+i,2)}, {r(Chi+i,2)}")
        for i in range(i0, i1, 2):
            A(f"v_pk_fma_f32 {r(vW+i,2)}, {r(vX+8+i,2)}, {r(Slo+i,2)}, {r(vW+i,2)} neg_lo:[1,0,0] neg_hi:[1,0,0]")
            A(f"v_pk_fma_f32 {r(vW+8+i,2)}, {r(vX+i,2)}, {r(Shi+i,2)}, {r(vW+8+i,2)}")
        for i in range(i0, i1, 2):
            A(f"v_cvt_pk_bf16_f32 v{dst+i//2}, v{vW+i}, v{vW+i+1}")
            A(f"v_cvt_pk_bf16_f32 v{dst+4+i//2}, v{vW+8+i}, v{vW+8+i+1}")
    wl = [0]
    def wait_landed():
        k = wl[0]; wl[0] += 1
        A("s_cmp_gt_u32 s13, s12")
        A(f"s_cbranch_scc1 L_wl{k}_ok")
        A(f"L_wl{k}:")
        A(f"ds_read_b32 v{vT}, v{vF} offset:32")
        guard()
        A("s_waitcnt lgkmcnt(0)")
        A(f"v_readfirstlane_b32 s13, v{vT}")
        A("s_cmp_gt_u32 s13, s12")
        A(f"s_cbranch_scc0 L_wl{k}")
        A(f"L_wl{k}_ok:")
    def set_done(inc):
        A("s_add_u32 s6, s12, 1")
        A(f"v_mov_b32 v{vT}, s6")
        A(f"ds_write_b32 v{vAD}, v{vT}")
        A(f"s_add_u32 s12, s12, {inc}")
    def wg_sync(val):
        k = wl[0]; wl[0] += 1
        A(f"v_mov_b32 v{vT}, {val}")
        A("s_waitcnt vmcnt(0) lgkmcnt(0)")
        A(f"ds_write_b32 v{vAD}, v{vT} offset:16")
        A(f"L_ws{k}:")
        A(f"ds_read_b128 {r(vD,4)}, v{vF} offset:16")
        guard()
        A("s_waitcnt lgkmcnt(0)")
        A(f"v_min3_u32 v{vT}, v{vD}, v{vD+1}, v{vD+2}")
        A(f"v_min_u32 v{vT}, v{vT}, v{vD+3}")
        A("s_nop 0")
        A(f"v_readfirstlane_b32 s6, v{vT}")
        A(f"s_cmp_ge_u32 s6, {val}")
        A(f"s_cbranch_scc0 L_ws{k}")
    def scales(ptrs, base):
        A(f"v_lshlrev_b32 v{vT}, 4, v3")
        A(f"v_lshl_add_u32 v{vT}, v2, 10, v{vT}")
        A("s_lshl_b32 s6, s5, 14")
        A("s_lshl_b32 s7, s4, 7")
        A("s_add_u32 s6, s6, s7")
        A("s_add_u32 s7, s6, 8192")
        A(f"s_mov_b32 s{ST+2}, 0x80000")
        for k, ptr in enumerate(ptrs):
            A(f"s_mov_b32 m0, {base + k*2048}")
            A(f"s_mov_b32 s{ST}, s{ptr}")
            A(f"s_mov_b32 s{ST+1}, s{ptr+1}")
            A(f"buffer_load_dwordx4 v{vT}, {srd(ST)}, s6 offen lds")
            A("s_addk_i32 m0, 0x400")
            A("s_nop 0")
            A(f"buffer_load_dwordx4 v{vT}, {srd(ST)}, s7 offen lds")
    def fly(op, x, t):
        A(f"v_{op}_f32_dpp v{x}, v{x}, v{x} row_ror:8 row_mask:0xf bank_mask:0xf")
        A(f"v_mov_b32 v{t}, v{x}")
        A("s_nop 1")
        A(f"v_permlane16_swap_b32 v{x}, v{t}")
        A(f"v_{op}_f32 v{x}, v{x}, v{t}")
        A(f"v_mov_b32 v{t}, v{x}")
        A("s_nop 1")
        A(f"v_permlane32_swap_b32 v{x}, v{t}")
        A(f"v_{op}_f32 v{x}, v{x}, v{t}")

    A("L_consumer:")
    A("s_sub_u32 s3, s3, 1                        ; w")
    A("s_mov_b32 s80, 0xffff0000")
    A(f"s_mov_b32 s81, {hex(f2u(128 ** -0.5 * math.log2(math.e)))}")
    A("s_lshl_b32 s14, s5, 12                     ; q / out byte offset of the head pair")
    A(f"v_lshlrev_b32 v{vOWS}, 4, v1")
    A(f"s_mov_b32 s{ST+3}, 0x00020000")
    A("s_lshl_b32 s7, s3, 2")
    A(f"v_add_u32 v{vAD}, s7, v{vF}")
    A(f"v_mov_b32 v{vKZ}, 0")
    A(f"ds_write_b32 v{vAD}, v{vKZ}")
    A(f"ds_write_b32 v{vAD}, v{vKZ} offset:16")
    A("s_waitcnt lgkmcnt(0)")
    A("s_barrier")
    A(f"s_load_dword s{sEP}, s[42:43], s56")
    A("s_cmp_lg_u32 s3, 0")
    A("s_cbranch_scc1 L_notq")
    A(f"v_lshlrev_b32 v{vT}, 4, v3")
    A(f"v_lshl_add_u32 v{vT}, v2, 8, v{vT}          ; q*256 + e*16")
    A(f"s_mov_b32 s{ST}, s30")
    A(f"s_mov_b32 s{ST+1}, s31")
    A(f"s_mov_b32 s{ST+2}, 2048")
    A(f"buffer_load_dwordx4 {r(vR,4)}, v{vT}, {srd(ST)}, 0 offen")
    A(f"buffer_load_dwordx4 {r(vR+4,4)}, v{vT}, {srd(ST)}, 0 offen offset:128")
    A(f"s_mov_b32 s{ST}, s32")
    A(f"s_mov_b32 s{ST+1}, s33")
    A(f"buffer_load_dwordx4 {r(vR+8,4)}, v{vT}, {srd(ST)}, 0 offen")
    A(f"buffer_load_dwordx4 {r(vR+12,4)}, v{vT}, {srd(ST)}, 0 offen offset:128")
    A(f"s_mov_b32 s{ST}, s16")
    A(f"s_mov_b32 s{ST+1}, s17")
    A(f"s_mov_b32 s{ST+2}, 131072")
    for k in range(4):
        A(f"buffer_load_dwordx4 {r(vQL+4*k,4)}, v{vT}, {srd(ST)}, s14 offen offset:{(k >> 1)*2048 + (k & 1)*128}")
    A("s_branch L_roles")
    A("L_notq:")
    A("s_cmp_lg_u32 s3, 1")
    A("s_cbranch_scc1 L_notsc")
    scales((22, 20), LDS_SC)
    A("s_branch L_roles")
    A("L_notsc:")
    if l2pf:
        A("s_cmp_lg_u32 s3, 2")
        A("s_cbranch_scc1 L_roles")
        A("s_lshr_b32 s6, s5, 2")
        A("s_lshl_b32 s6, s6, 3")
        A("s_add_u32 s6, s6, s4")
        A("s_lshl_b32 s6, s6, 14")
        A("s_and_b32 s7, s5, 3")
        A("s_lshl_b32 s7, s7, 12")
        A("s_add_u32 s6, s6, s7")
        A(f"v_lshlrev_b32 v{vT}, 7, v1")
        A(f"s_mov_b32 s{ST}, s34")
        A(f"s_mov_b32 s{ST+1}, s35")
        A(f"s_mov_b32 s{ST+2}, 0x100000")
        A("s_mov_b32 exec_hi, 0")
        A(f"buffer_load_dword v{vQL}, v{vT}, {srd(ST)}, s6 offen")
        A(f"s_mov_b32 s{ST}, s36")
        A(f"s_mov_b32 s{ST+1}, s37")
        A(f"buffer_load_dword v{vQL+1}, v{vT}, {srd(ST)}, s6 offen")
        A("s_mov_b64 exec, -1")
    A("L_roles:")
    A("v_bfe_u32 v5, v1, 1, 3")
    A("s_lshl_b32 s6, s57, 2")
    A("s_add_u32 s6, s6, s3")
    A(f"v_lshl_add_u32 v{vAKZ}, v5, 3, s6")
    A(f"v_lshlrev_b32 v{vAKZ}, 1, v{vAKZ}")
    A(f"v_add_u32 v{vAKZ}, {LDS_SC}, v{vAKZ}")
    A(f"v_lshl_add_u32 v{vAKS}, v2, 3, s6")
    A(f"v_lshlrev_b32 v{vAKS}, 1, v{vAKS}")
    A(f"v_add_u32 v{vAKS}, {LDS_SC + 2048}, v{vAKS}")
    A(f"v_lshrrev_b32 v{vT}, 4, v1")
    A(f"v_and_b32 v{vU}, 1, v1")
    A(f"v_lshl_add_u32 v{vT}, v{vT}, 1, v{vU}       ; e = 2g+a")
    A(f"v_and_b32 v{vU}, 4, v5")
    A(f"v_xor_b32 v{vU}, v{vU}, v{vT}")
    A(f"v_lshlrev_b32 v{vU}, 4, v{vU}")
    A(f"v_lshl_add_u32 v{vBCS}, v5, 7, v{vU}")
    A("s_lshl_b32 s7, s3, 11")
    A("s_add_u32 s7, s7, 0x4000")
    A(f"v_add_u32 v{vBCS}, s7, v{vBCS}")
    A("s_lshl_b32 s7, s3, 12")
    A(f"v_lshlrev_b32 v{vBK}, 10, v4               ; (g>>1)*1024")
    A(f"v_lshl_add_u32 v{vBK}, v5, 7, v{vBK}        ; + rho*128")
    A(f"v_and_b32 v{vT}, 3, v{vT}")
    A(f"v_lshl_add_u32 v{vBK}, v{vT}, 5, v{vBK}     ; + (e&3)*32")
    A(f"v_lshrrev_b32 v{vT}, 2, v5")
    A(f"v_lshl_add_u32 v{vBK}, v{vT}, 4, v{vBK}     ; + (rho>>2)*16")
    A(f"v_add_u32 v{vBK}, s7, v{vBK}")
    A("s_lshl_b32 s7, s3, 2")
    A("s_lshl_b32 s6, s57, 10")
    A("s_add_u32 s7, s7, s6")
    A(f"s_add_u32 s7, s7, {LDS_S}")
    A(f"v_add_u32 v{vASw}, s7, v{vOWS}")
    A(f"v_mov_b32 v{vKS}, 0")
    A(f"v_mov_b32 v{vM}, 0xff7fffff")
    A(f"v_mov_b32 v{vMB}, 0xff7fffff")
    A("s_mov_b32 s12, 1")
    A("s_mov_b32 s13, 0")
    A("s_mov_b32 s8, 0                            ; ring half offset")
    A("s_lshl_b32 s9, s57, 4")
    A("s_sub_u32 s9, 8, s9")
    A("s_lshl_b32 s11, s57, 11")
    A("s_add_u32 s11, s11, 1024")
    A("s_cmp_eq_u32 s3, 2")
    A(f"s_cselect_b32 s10, {3 * VSU + 1}, 0")
    if touch:
        A("s_cmp_eq_u32 s3, 0")
        A(f"s_cselect_b32 s10, {3 * touch + 1}, s10")
    A("s_cmp_lg_u32 s3, 0")
    A("s_cbranch_scc1 L_qdone")
    A("s_waitcnt vmcnt(4)")
    unpack(vC, vR, 16)
    A(f"v_lshl_add_u32 v{vT}, v3, 3, v2")
    A(f"v_lshlrev_b32 v{vT}, 4, v{vT}")
    A(f"v_add_u32 v{vT}, {LDS_Q}, v{vT}")
    for hb in range(2):
        A(f"s_waitcnt vmcnt({2 - 2*hb})")
        unpack(vX, vQL + 8 * hb, 8)
        rope(0, 8, vQ + 8 * hb)
        A(f"ds_write_b128 v{vT}, {r(vQ+8*hb,4)} offset:{2048*hb}")
        A(f"ds_write_b128 v{vT}, {r(vQ+8*hb+4,4)} offset:{2048*hb+1024}")
    A("L_qdone:")
    wg_sync(1)
    A(f"v_add_u32 v{vU}, {LDS_Q}, v{vOWS}")
    for k in range(4):
        A(f"ds_read_b128 {r(vQ+4*k,4)}, v{vU} offset:{k*1024}")
    A("L_kunit:")
    A("s_sub_u32 s11, 2048, s11")
    A(f"v_add_u32 v{vAK0}, s8, v{vBK}")
    A(f"v_add_u32 v{vACS}, s8, v{vBCS}")
    A(f"v_xor_b32 v{vAK1}, 16, v{vAK0}")
    A("s_cmp_eq_u32 s12, s10")
    A("s_cbranch_scc1 L_vscales")
    A("L_kgo:")
    for hb in range(2):
        wait_landed()
        o = hb * 0x8000
        if hb == 0:
            for part in range(4):
                A(f"ds_read_b128 {r(vR+4*part,4)}, v{vACS} offset:{(part >> 1)*8192 + (part & 1)*1024}")
        A(f"ds_read_b128 {r(vX,4)}, v{vAK0} offset:{o}")
        A(f"ds_read_b128 {r(vX+8,4)}, v{vAK0} offset:{o+2048}")
        A(f"ds_read_u16_d16_hi v{vKZ}, v{vAKZ} offset:{hb*1024}")
        A(f"ds_read_b128 {r(vX+4,4)}, v{vAK1} offset:{o}")
        A(f"ds_read_b128 {r(vX+12,4)}, v{vAK1} offset:{o+2048}")
        A(f"ds_read_u16_d16_hi v{vKS}, v{vAKS} offset:{hb*1024}")
        if hb == 0:
            A("s_waitcnt lgkmcnt(8)")
            unpack(vC, vR, 8)
            A("s_waitcnt lgkmcnt(0)")
            set_done(1)
            unpack(vC + 16, vR + 8, 8)
        for part in range(2):
            if hb == 1:
                A(f"s_waitcnt lgkmcnt({3 if part == 0 else 0})")
                if part == 1:
                    set_done(2)
            for b in (vX + 4 * part, vX + 8 + 4 * part):
                for i in range(4):
                    A(f"v_cvt_f32_i32 v{b+i}, v{b+i}")
            for b in (vX + 4 * part, vX + 8 + 4 * part):
                for i in (0, 2):
                    A(f"v_pk_add_f32 {r(b+i,2)}, {r(b+i,2)}, {r(vKZ,2)} op_sel_hi:[1,0] neg_lo:[0,1] neg_hi:[0,1]")
            rope(4 * part, 4 * part + 4, vA)
        A(f"v_mul_f32 v{vU}, s81, v{vKS}")
        A("s_nop 0")
        A(f"v_mfma_f32_16x16x32_bf16 {r(vD,4)}, {r(vA,4)}, {r(vQ+8*hb,4)}, 0")
        A(f"v_mfma_f32_16x16x32_bf16 {r(vD,4)}, {r(vA+4,4)}, {r(vQ+8*hb+4,4)}, {r(vD,4)}")
        if hb:
            A(f"v_add_u32 v{vAKZ}, s9, v{vAKZ}")
            A(f"v_add_u32 v{vAKS}, s9, v{vAKS}")
            A("s_sub_u32 s9, 128, s9")
            A("s_sub_u32 s8, 0xc000, s8")
            A("s_cmp_lt_u32 s12, 48")
            A("s_nop 2")
        else:
            A("s_nop 7")
        A(f"v_add_f32_dpp v{vS}, v{vD+1}, v{vD} row_ror:8 row_mask:0xf bank_mask:0x3")
        A(f"v_add_f32_dpp v{vS}, v{vD+2}, v{vD+3} row_ror:8 row_mask:0xf bank_mask:0xc")
        A(f"v_mul_f32 v{vS}, v{vS}, v{vU}")
        A(f"ds_write_b32 v{vASw}, v{vS} offset:{hb*16384}")
        A(f"v_max_f32 v{vMB if hb else vM}, v{vMB if hb else vM}, v{vS}")
    A(f"v_add_u32 v{vASw}, s11, v{vASw}")
    A("s_cbranch_scc1 L_kunit")
    A("s_mov_b32 s12, 48")
    A(f"v_max_f32_dpp v{vM}, v{vM}, v{vM} row_ror:8 row_mask:0xf bank_mask:0xf")
    A(f"v_max_f32_dpp v{vMB}, v{vMB}, v{vMB} row_ror:8 row_mask:0xf bank_mask:0xf")
    A(f"v_mov_b32 v{vU}, v{vM}")
    A(f"v_mov_b32 v{vS}, v{vMB}")
    A("v_lshlrev_b32 v5, 4, v3")
    A(f"v_add_u32 v5, {LDS_MX}, v5")
    A(f"v_permlane16_swap_b32 v{vM}, v{vU}")
    A(f"v_permlane16_swap_b32 v{vMB}, v{vS}")
    A(f"v_max_f32 v{vM}, v{vM}, v{vU}")
    A(f"v_max_f32 v{vMB}, v{vMB}, v{vS}")
    A(f"v_mov_b32 v{vU}, v{vM}")
    A(f"v_mov_b32 v{vS}, v{vMB}")
    A("s_lshl_b32 s7, s3, 2")
    A(f"v_add_u32 v{vKZ}, s7, v5")
    A(f"v_permlane32_swap_b32 v{vM}, v{vU}")
    A(f"v_permlane32_swap_b32 v{vMB}, v{vS}")
    A(f"v_max_f32 v{vM}, v{vM}, v{vU}")
    A(f"v_max_f32 v{vMB}, v{vMB}, v{vS}")
    A(f"ds_write_b32 v{vKZ}, v{vM}")
    A(f"ds_write_b32 v{vKZ}, v{vMB} offset:128")
    A(f"v_lshlrev_b32 v{vBV}, 4, v4")
    A(f"v_xor_b32 v{vBV}, v{vBV}, v{vOWS}")
    A("s_lshl_b32 s7, s3, 10")
    A(f"v_add_u32 v{vBV}, s7, v{vBV}")
    A(f"v_add_u32 v{vASr}, {LDS_S}, v{vOWS}")
    A(f"v_lshlrev_b32 v{vAVS}, 4, v2")
    A(f"v_add_u32 v{vAVS}, {LDS_SC + 4096}, v{vAVS}")
    A(f"v_add_u32 v{vOML}, {WS_ML}, v{vOWS}")
    A("s_lshl_b32 s7, s3, 13")
    A(f"v_add_u32 v{vASw}, s7, v{vASr}")
    A("s_lshl_b32 s7, s3, 9")
    A(f"v_add_u32 v{vACS}, s7, v{vAVS}")
    rehalf()
    if HV is not None:
        A("s_lshl_b32 s9, s57, 4")
        A("s_sub_u32 s9, 8, s9")
    A("s_lshl_b32 s7, s57, 3")
    A(f"v_add_u32 v{vASr}, s7, v{vASr}")
    A(f"v_add_u32 v{vAVS}, s7, v{vAVS}")
    A(f"v_bfe_u32 v{vQP}, v1, 3, 2")
    A(f"v_lshl_add_u32 v{vQP}, v{vQP}, 1, v4")
    A("s_lshl_b32 s7, s3, 7")
    A(f"v_lshl_add_u32 v{vU}, v3, 4, s7             ; w*128 + c*16")
    A(f"v_lshl_add_u32 v{vOWS}, v{vQP}, 9, v{vU}     ; publish offset q'*512 + w*128 + c*16")
    A(f"v_lshl_add_u32 v{vOG}, v{vQP}, 12, v{vU}     ; gather offset: lanes of row q' fetch member q'")
    A(f"v_cmp_ne_u32 s[62:63], s4, v{vQP}")
    A(f"v_bfe_u32 v{vOOUT}, v1, 4, 1")
    A(f"v_lshl_add_u32 v{vOOUT}, v{vOOUT}, 1, v4     ; j = 2*b4 + b5")
    A(f"v_lshrrev_b32 v{vU}, 1, v{vU}")
    A(f"v_lshl_add_u32 v{vOOUT}, v{vOOUT}, 1, v{vU}  ; w*64 + c*8 + j*2")
    A("s_lshl_b32 s7, s4, 8")
    A("s_add_u32 s14, s14, s7")
    A("s_lshl_b32 s66, s5, 16")
    A("s_lshl_b32 s7, s4, 12")
    A("s_add_u32 s10, s66, s7")
    A("s_add_u32 s15, s10, 0x8000")
    A("s_lshl_b32 s7, s4, 9")
    A("s_add_u32 s66, s66, s7")
    A("s_add_u32 s67, s66, 0x8000")
    mksrd(SWS, 42, 0 if nostore else 0x210000)
    mksrd(SOUT, 38, 131072)
    A(f"s_mul_i32 s{sEP}, s{sEP}, 0x9e3779b1")
    A(f"s_add_u32 s{sEP}, s{sEP}, 0x7f4a7c15")
    for i in range(4):
        A(f"s_bfe_u32 s{90+i}, s{sEP}, {hex((8 << 16) | (8 * i))}")
    A(f"v_mov_b32 v{vN}, 0xffffff00")
    A("s_mov_b32 s8, 0                            ; ring offset of the unit")
    A(f"v_mov_b32 v{vL2}, 0")
    A(f"v_mov_b32 v{vL2+1}, 0")
    A("s_lshr_b32 s7, s3, 1")
    A("s_lshl_b32 s6, s7, 7")
    A(f"v_add_u32 v{vKS}, s6, v5")
    wg_sync(2)
    A(f"ds_read_b128 {r(vD,4)}, v{vKS}")
    A("s_mov_b32 s11, 4")
    A("s_waitcnt lgkmcnt(0)")
    A(f"v_max3_f32 v{vM}, v{vD}, v{vD+1}, v{vD+2}")
    A(f"v_max_f32 v{vM}, v{vM}, v{vD+3}")
    A("L_pblk:")
    A(f"ds_read_b128 {r(vP,4)}, v{vASw}")
    A(f"ds_read_b128 {r(vP+4,4)}, v{vASw} offset:1024")
    A(f"ds_read_b128 {r(vVS,4)}, v{vACS}")
    A(f"v_add_u32 v{vACS}, 128, v{vACS}")
    A("s_sub_u32 s11, s11, 1")
    A("s_cmp_lg_u32 s11, 0")
    A("s_waitcnt lgkmcnt(1)")
    for i in range(0, 8, 2):
        A(f"v_pk_add_f32 {r(vP+i,2)}, {r(vP+i,2)}, {r(vM,2)} op_sel_hi:[1,0] neg_lo:[0,1] neg_hi:[0,1]")
    for i in range(8):
        A(f"v_exp_f32 v{vP+i}, v{vP+i}")
    A("s_waitcnt lgkmcnt(0)")
    unpack(vVU, vVS, 4)
    for i in range(0, 8, 2):
        A(f"v_pk_mul_f32 {r(vVU+i,2)}, {r(vVU+i,2)}, {r(vP+i,2)}")
    for i in range(4):
        A(f"v_cvt_pk_bf16_f32 v{vPP+i}, v{vVU+2*i}, v{vVU+2*i+1}")
    A(f"ds_write_b128 v{vASw}, {r(vPP,4)}")
    for i in range(0, 8, 2):
        A(f"v_pk_add_f32 {r(vL2,2)}, {r(vL2,2)}, {r(vP+i,2)}")
    A(f"v_add_u32 v{vASw}, 2048, v{vASw}")
    A("s_cbranch_scc1 L_pblk")
    A(f"v_add_f32 v{vL}, v{vL2}, v{vL2+1}")
    A("s_lshl_b32 s6, s7, 3")
    A("v_add_u32 v5, s6, v5")
    fly("add", vL, vU)
    A(f"ds_write_b32 v{vKZ}, v{vL} offset:256")
    for i in range(40):
        A(f"v_mov_b32 v{vACC[0]+i}, 0")
    wg_sync(3)
    A("s_mov_b32 s11, 79")
    A("s_bitcmp0_b32 s3, 0")
    A("s_cbranch_scc1 L_vunit")
    A(f"s_mov_b32 s11, {48 + 2 * F0 + 1}")
    A(f"ds_read_b64 {r(vL2,2)}, v5 offset:256")
    if clk:
        A("s_memrealtime s[60:61]")
    A("s_lshl_b32 s65, s7, 10")
    A("s_lshl_b32 s6, s5, 11")
    A("s_add_u32 s65, s65, s6")
    A("s_lshl_b32 s6, s4, 7")
    A("s_add_u32 s6, s6, s65")
    A("s_waitcnt lgkmcnt(0)")
    A(f"v_add_f32 v{vL}, v{vL2}, v{vL2+1}")
    A(f"v_mov_b32 v{vL2}, s{sEP}")
    A(f"v_mov_b32 v{vL2+1}, {'s60' if clk else 's83'}")
    A("s_mov_b64 exec, 0xff")
    A(f"buffer_store_dwordx4 {r(vM,4)}, v{vOML}, {srd(SWS)}, s6 offen sc1")
    A("s_mov_b64 exec, -1")
    def vcvt(ts):
        for t in ts:
            for j in range(4):
                A(f"v_cvt_f32_i32 v{vX+4*t+j}, v{vX+4*t+j}")
    def vpack(pr):
        for j in range(4):
            A(f"v_cvt_pk_bf16_f32 v{vA+2*j+pr}, v{vX+8*pr+j}, v{vX+8*pr+4+j}")
    def vmfma(hb):
        for j in range(4):
            A(f"v_mfma_f32_16x16x16_bf16 {r(vACC[hb]+4*j,4)}, {r(vPP+2*hb,2)}, {r(vA+2*j,2)}, {r(vACC[hb]+4*j,4)}")
    def vstage(hb):
        wait_landed()
        if hb == 0 and stamps:
            A(f"ds_read_b32 v{vU}, v{vF} offset:40")
        for t in range(4):
            A(f"ds_read_b128 {r(vX+4*t,4)}, v{vAV} offset:{(4*hb+t)*4096}")
        A("s_waitcnt lgkmcnt(2)")
        if hb == 0 and not EARLY:
            for k in range(2):
                A(f"v_mfma_f32_16x16x16_bf16 {r(vACC[k]+16,4)}, {r(vPP+2*k,2)}, {r(vVZ+2*k,2)}, {r(vACC[k]+16,4)}")
        vcvt([0, 1])
        vpack(0)
        A("s_waitcnt lgkmcnt(0)")
        vcvt([2, 3])
        vpack(1)
        vmfma(hb)
        set_done(1)
        if hb == 0 and stamps:
            A(f"v_readfirstlane_b32 s95, v{vU}")
    A("L_vunit:")
    A(f"ds_read_b64 {r(vPP,2)}, v{vASr}")
    A(f"ds_read_b64 {r(vPP+2,2)}, v{vASr} offset:16384")
    A(f"ds_read_b64 {r(vVZ,2)}, v{vAVS} offset:2048")
    A(f"ds_read_b64 {r(vVZ+2,2)}, v{vAVS} offset:3072")
    A("s_cmp_gt_i32 s9, 64")
    A("s_cselect_b32 s6, 1920, 0")
    A("s_add_u32 s6, s6, s9")
    A(f"v_add_u32 v{vASr}, s6, v{vASr}")
    A(f"v_add_u32 v{vAVS}, s9, v{vAVS}")
    A("s_sub_u32 s9, 128, s9")
    A(f"v_add_u32 v{vAV}, s8, v{vBV}")
    if EARLY:
        A("s_cmp_eq_u32 s12, 78")
        A("s_waitcnt lgkmcnt(0)")
        for k in range(2):
            A(f"v_mfma_f32_16x16x16_bf16 {r(vACC[k]+16,4)}, {r(vPP+2*k,2)}, {r(vVZ+2*k,2)}, {r(vACC[k]+16,4)}")
        A("s_cbranch_scc1 L_pre")
        A("L_vgo:")
    vstage(0)
    A("s_cmp_eq_u32 s12, s11")
    A("s_cbranch_scc1 L_hook")
    A("L_vmid:")
    vstage(1)
    A("s_add_u32 s8, s8, 0x8000")
    A(f"s_cmp_eq_u32 s8, {RING}")
    A("s_cselect_b32 s8, 0, s8")
    A("s_branch L_vunit")
    A("L_vscales:")
    if touch:
        A("s_cmp_lg_u32 s3, 0")
        A("s_cbranch_scc1 L_vsc")
        A("s_lshl_b32 s6, s5, 22")
        A("s_add_u32 s7, s6, 0x200000")
        A("s_load_dword s95, s[24:25], s6")
        A("s_load_dword s95, s[24:25], s7")
        A("s_load_dword s95, s[26:27], 0")
        A("s_load_dword s95, s[28:29], 0")
        A("s_load_dword s95, s[38:39], 0")
        A("s_load_dword s95, s[42:43], 0")
        A("s_waitcnt lgkmcnt(0)")
        A("s_branch L_kgo")
        A("L_vsc:")
    scales((26, 28), LDS_SC + 4096)
    A("s_branch L_kgo")
    A("L_hook:")
    A("s_cmp_eq_u32 s12, 79")
    A("s_cbranch_scc1 L_last")
    A(f"s_cmp_lg_u32 s12, {48 + 2 * F0 + 1}")
    A("s_cbranch_scc1 L_fac")
    A("L_mlre:")
    A(f"buffer_load_dwordx4 {r(vML,4)}, v{vOML}, {srd(SWS)}, s65 offen sc1")
    A("s_add_u32 s11, s12, 2")
    A(f"s_cmp_lt_u32 s12, {48 + 2 * (FB + 1) + 1}")
    A("s_cbranch_scc1 L_vmid")
    guard()
    A("L_fac:")
    A("s_waitcnt vmcnt(0)")
    A(f"v_cmp_ne_u32 vcc, s{sEP}, v{vML+2}")
    A(f"v_mov_b32 v{vS}, v{vML}")
    if not nostore:
        A("s_cbranch_vccnz L_mlre")
    A("s_mov_b32 s11, 79")
    A("s_nop 0")
    fly("max", vS, vU)
    A(f"v_sub_f32 v{vML}, v{vML}, v{vS}")
    A(f"v_sub_f32 v{vM}, v{vM}, v{vS}")
    A(f"v_exp_f32 v{vML}, v{vML}")
    A(f"v_exp_f32 v{vM}, v{vM}")
    A(f"v_mul_f32 v{vML}, v{vML}, v{vML+1}")
    A("s_lshl_b32 s6, s3, 1")
    A(f"s_add_u32 s6, s6, {LDS_MX + 384 - 2}")
    fly("add", vML, vU)
    A(f"v_rcp_f32 v{vML}, v{vML}")
    A(f"v_lshl_add_u32 v{vU}, v3, 3, s6")
    A(f"v_mul_f32 v{vM}, v{vM}, v{vML}")
    A(f"v_mov_b32 v{vT}, 4")
    A(f"ds_write_b32 v{vU}, v{vM}")
    A(f"ds_write_b32 v{vAD}, v{vT} offset:16")
    if PC:
        gup, gdn, dup, ddn, dead = PC
        A("s_cmp_lg_u32 s3, 3")
        A("s_cbranch_scc1 L_vmid")
        A(f"v_sub_u32 v{vML+3}, v{vL2+1}, v{vML+3}")
        A(f"v_cvt_f32_i32 v{vML+3}, v{vML+3}")
        A("s_nop 1")
        fly("add", vML + 3, vU)
        A(f"v_cvt_i32_f32 v{vU}, v{vML+3}")
        A("s_nop 0")
        A(f"v_readfirstlane_b32 s6, v{vU}")
        A("s_ashr_i32 s6, s6, 3")
        if stamps:
            A("s_mov_b32 s94, s6")
        A(f"s_sub_i32 s6, s6, {dead}")
        A("s_cmp_gt_i32 s6, 0")
        A(f"s_cselect_b32 s7, {gup}, {-gdn}")
        A(f"s_cselect_b32 s64, {dup}, {ddn}")
        A("s_mul_i32 s6, s6, s7")
        A("s_lshr_b32 s6, s6, 4")
        A("s_add_u32 s6, s6, s12")
        A("s_add_u32 s6, s6, 2")
        A("s_lshl_b32 s6, s6, 8")
        A("s_or_b32 s6, s6, s64")
        A(f"v_mov_b32 v{vT}, s6")
        A(f"ds_write_b32 v{vF}, v{vT} offset:36")
    A("s_branch L_vmid")
    def finalize(hb, dst):
        a = vACC[hb]
        for j in range(4):
            A(f"v_permlane32_swap_b32 v{a+4*j}, v{a+4*j+1}")
            A(f"v_permlane32_swap_b32 v{a+4*j+2}, v{a+4*j+3}")
        for j in range(4):
            A(f"v_add_f32_dpp v{dst+j}, v{a+4*j+1}, v{a+4*j} row_ror:8 row_mask:0xf bank_mask:0x3")
            A(f"v_add_f32_dpp v{dst+j}, v{a+4*j+2}, v{a+4*j+3} row_ror:8 row_mask:0xf bank_mask:0xc")
        for i in (0, 2):
            A(f"v_pk_mul_f32 {r(dst+i,2)}, {r(dst+i,2)}, {r(vMA,2)} " + ("op_sel:[0,1] op_sel_hi:[1,1]" if hb else "op_sel_hi:[1,0]"))
        for j in range(4):
            A(f"v_and_or_b32 v{dst+j}, v{dst+j}, v{vN}, s{90+j}")
        A("s_mov_b64 exec, s[62:63]")
        A(f"buffer_store_dwordx4 {r(dst,4)}, v{vOWS}, {srd(SWS)}, {'s15' if hb else 's10'} offen {xfl}")
    def gather(dst, soff):
        A(f"buffer_load_dwordx4 {r(dst,4)}, v{vOG}, {srd(SWS)}, {soff} offen {xfl}")
    def check(src):
        for j in range(4):
            A(f"v_xor_b32 v{vTm+j}, s{90+j}, v{src+j}")
        A(f"v_or3_b32 v{vU}, v{vTm}, v{vTm+1}, v{vTm+2}")
        A(f"v_or_b32 v{vU}, v{vU}, v{vTm+3}")
        A(f"v_cmp_ne_u32_sdwa vcc, v{vU}, v{vS} src0_sel:BYTE_0 src1_sel:DWORD")
    def regather(dst, soff):
        if stamps:
            A("s_add_u32 s11, s11, 1")
        A("s_mov_b64 exec, vcc")
        gather(dst, soff)
        A("s_mov_b64 exec, -1")
        guard()
    def reduce_store(off, keep=None):
        A(f"v_permlane32_swap_b32 v{vTm}, v{vTm+1}")
        A(f"v_permlane32_swap_b32 v{vTm+2}, v{vTm+3}")
        A(f"v_add_f32 v{vTm}, v{vTm}, v{vTm+1}")
        A(f"v_add_f32 v{vTm+2}, v{vTm+2}, v{vTm+3}")
        A("s_nop 1")
        A(f"v_permlane16_swap_b32 v{vTm}, v{vTm+2}")
        A(f"v_add_f32 v{vTm}, v{vTm}, v{vTm+2}")
        A("s_nop 1")
        A(f"v_add_f32_dpp v{vTm}, v{vTm}, v{vTm} row_ror:8 row_mask:0xf bank_mask:0xf")
        if keep is not None:
            A(f"v_cvt_pk_bf16_f32 v{keep}, v{vTm}, v{vTm}")
            return
        A(f"v_cvt_pk_bf16_f32 v{vU}, v{vTm}, v{vTm}")
        A("s_mov_b64 exec, s[64:65]")
        A(f"buffer_store_short v{vU}, v{vOOUT}, {srd(SOUT)}, s14 offen offset:{off} {outfl}")
    A("; ---- last unit: fetch the factors and take the zero-point terms out ----")
    A("L_pre:" if EARLY else "L_last:")
    A(f"v_lshlrev_b32 v{vU}, 3, v{vQP}")
    A(f"v_add_u32 v{vU}, {LDS_MX + 384}, v{vU}")
    A("L_fw:")
    A(f"ds_read_b128 {r(vD,4)}, v{vF} offset:16")
    A(f"ds_read_b64 {r(vMA,2)}, v{vU}")
    guard()
    A("s_waitcnt lgkmcnt(0)")
    A(f"v_min_u32 v{vT}, v{vD+1}, v{vD+3}")
    A("s_mov_b32 s64, 0x00ff00ff")
    A(f"v_readfirstlane_b32 s6, v{vT}")
    A("s_mov_b32 s65, 0x00ff00ff")
    A("s_cmp_ge_u32 s6, 4")
    A("s_cbranch_scc0 L_fw")
    for hb in range(2):
        for i in range(0, 16, 2):
            A(f"v_pk_add_f32 {r(vACC[hb]+i,2)}, {r(vACC[hb]+i,2)}, {r(vACC[hb]+16+(i&2),2)} neg_lo:[0,1] neg_hi:[0,1]")
    if EARLY:
        A("s_branch L_vgo")
        A("L_last:")
    finalize(0, vDA)
    A("s_mov_b64 exec, -1")
    A(f"v_mov_b32 v{vS}, 0")
    if stamps:
        A("s_mov_b32 s11, 0")
    A("s_barrier")
    for t in (0, 1):
        A(f"ds_read_b128 {r(vX+4*t,4)}, v{vAV} offset:{(4+t)*4096}")
    A("s_waitcnt lgkmcnt(0)")
    vcvt([0, 1])
    vpack(0)
    A("s_barrier")
    for t in (2, 3):
        A(f"ds_read_b128 {r(vX+4*t,4)}, v{vAV} offset:{(4+t)*4096}")
    A("s_mov_b64 exec, s[62:63]")
    gather(vZ, "s66")
    gather(vY, "s67")
    A("s_mov_b64 exec, -1")
    A("s_waitcnt lgkmcnt(1)")
    vcvt([2])
    A("s_waitcnt lgkmcnt(0)")
    vcvt([3])
    vpack(1)
    vmfma(1)
    A("s_nop 4")
    finalize(1, vD)
    if stamps:
        A("s_memrealtime s[60:61]")
    A("s_not_b64 exec, exec")
    A("s_waitcnt vmcnt(1)")
    for j in range(4):
        A(f"v_mov_b32 v{vZ+j}, v{vDA+j}")
        A(f"v_mov_b32 v{vY+j}, v{vD+j}")
    A("s_mov_b64 exec, -1")
    if ROT and not nostore:
        sets = [vY] + [vX + 4 * i for i in range(ROT - 1)]
        check(vY)
        A("s_cbranch_vccz L_bfirst")
        if ROT > 1:
            A("s_mov_b64 s[96:97], vcc")
        for st in sets[1:]:
            for j in range(4):
                A(f"v_mov_b32 v{st+j}, v{vY+j}")
        A("s_mov_b64 exec, vcc")
        gather(sets[0], "s67")
        A("s_mov_b64 exec, -1")
        check(vZ)
        A("s_cbranch_vccz L_a0")
        regather(vZ, "s66")
        if ROT > 1:
            A("s_mov_b64 exec, s[96:97]")
            for st in sets[1:]:
                A(f"s_sleep {SLP}")
                gather(st, "s67")
            A("s_mov_b64 exec, -1")
        A("L_r1:")
        A(f"s_waitcnt vmcnt({ROT})")
        check(sets[0])
        A("s_cbranch_vccz L_bdone")
        regather(sets[0], "s67")
        A(f"s_waitcnt vmcnt({ROT})")
        check(vZ)
        A("s_cbranch_vccz L_a1")
        regather(vZ, "s66")
        for st in sets[1:]:
            A(f"s_waitcnt vmcnt({ROT})")
            check(st)
            A("s_cbranch_vccz L_bdone")
            regather(st, "s67")
        A("s_branch L_r1")
        A("L_a0:")
        reduce_store(0, vKZ)
        if ROT > 1:
            A("s_mov_b64 exec, s[96:97]")
            for st in sets[1:]:
                A(f"s_sleep {SLP}")
                gather(st, "s67")
            A("s_mov_b64 exec, -1")
        A("L_r2:")
        for i, st in enumerate(sets):
            if i == 1 % ROT:
                A("L_r2b:")
            A(f"s_waitcnt vmcnt({ROT - 1})")
            check(st)
            A("s_cbranch_vccz L_sumb")
            regather(st, "s67")
        A("s_branch L_r2")
        A("L_a1:")
        reduce_store(0, vKZ)
        A("s_branch L_r2b")
        A("L_bdone:")
        A("s_waitcnt vmcnt(0)")
        A("L_bfirst:")
        reduce_store(2048)
        A("s_mov_b64 exec, -1")
        A("L_cha:")
        check(vZ)
        A("s_cbranch_vccz L_suma")
        regather(vZ, "s66")
        A("s_waitcnt vmcnt(0)")
        A("s_branch L_cha")
        A("L_suma:")
        reduce_store(0)
        A("s_branch L_stamp" if stamps else "s_endpgm")
        A("L_sumb:")
        reduce_store(2048)
        A(f"buffer_store_short v{vKZ}, v{vOOUT}, {srd(SOUT)}, s14 offen {outfl}")
    else:
        check(vY)
        if not nostore:
            A("s_cbranch_vccz L_bok")
            regather(vY, "s67")
            A("s_branch L_cha")
        A("L_bok:")
        reduce_store(2048)
        A("s_mov_b64 exec, -1")
        A("s_mov_b32 s67, 0")
        A("L_cha:")
        check(vZ)
        if not nostore:
            A("s_cbranch_vccnz L_rea")
        reduce_store(0)
        A("s_mov_b64 exec, -1")
        A("s_cmp_eq_u32 s67, 0")
        A("s_cbranch_scc1 " + ("L_stamp" if stamps else "L_end"))
        A("s_waitcnt vmcnt(1)")
        if NSET == 1:
            A("L_chb:")
            check(vY)
            A("s_cbranch_vccz L_sumb")
            regather(vY, "s67")
            A("s_waitcnt vmcnt(0)")
            A("s_branch L_chb")
        else:
            sets = [vY] + [vX + 4 * i for i in range(NSET - 1)]
            check(vY)
            A("s_cbranch_vccz L_sumb")
            for st in sets[1:]:
                for j in range(4):
                    A(f"v_mov_b32 v{st+j}, v{vY+j}")
            A("s_mov_b64 exec, vcc")
            for i, st in enumerate(sets):
                if i:
                    A(f"s_sleep {SLP}")
                gather(st, "s67")
            A("s_mov_b64 exec, -1")
            A("L_chb:")
            for st in sets:
                A(f"s_waitcnt vmcnt({NSET - 1})")
                check(st)
                A("s_cbranch_vccz L_sumb")
                regather(st, "s67")
            A("s_branch L_chb")
        A("L_rea:")
        regather(vZ, "s66")
        A("s_waitcnt vmcnt(0)")
        A("s_branch L_cha")
        A("L_sumb:")
        reduce_store(2048)
    if stamps:
        A("L_stamp:")
        if not cst:
            A("s_memrealtime s[58:59]")
            A("s_waitcnt vmcnt(0)")
        A("s_memrealtime s[86:87]")
        A("s_getreg_b32 s88, hwreg(HW_REG_XCC_ID)")
        A("s_lshl_b32 s7, s95, 8")
        A("s_or_b32 s88, s88, s7")
        A("s_waitcnt lgkmcnt(0)")
        A("s_mov_b64 exec, 1")
        A("v_mov_b32 v8, s84")
        A("v_mov_b32 v9, s85")
        A("s_lshl_b32 s94, s94, 16")
        A("s_or_b32 s88, s88, s94")
        A("v_mov_b32 v10, s86")
        A("v_mov_b32 v11, s87")
        A("v_mov_b32 v12, s88")
        A("v_mov_b32 v13, s11")
        A("s_lshl_b32 s89, s2, 2")
        A("s_or_b32 s89, s89, s3")
        A("s_lshl_b32 s89, s89, 5")
        A("s_add_u32 s89, s89, 0x400000")
        A("v_mov_b32 v2, 0")
        A(f"s_mov_b32 s{SWS+2}, 0x800000")
        A(f"buffer_store_dwordx4 v[8:11], v2, {srd(SWS)}, s89 offen")
        A("v_mov_b32 v14, s58")
        A("v_mov_b32 v15, s60")
        A(f"buffer_store_dwordx4 v[12:15], v2, {srd(SWS)}, s89 offen offset:16")
    A("L_end:")
    A("s_endpgm")
    A('.section .rodata,"a"')
    A(".p2align 6")
    A(f".amdhsa_kernel {KNAME}")
    A(f"  .amdhsa_next_free_vgpr {NV}")
    A("  .amdhsa_next_free_sgpr 98")
    A(f"  .amdhsa_accum_offset {NV}")
    A("  .amdhsa_group_segment_fixed_size 0")
    A("  .amdhsa_kernarg_size 112")
    A("  .amdhsa_user_sgpr_count 2")
    A("  .amdhsa_user_sgpr_kernarg_segment_ptr 1")
    A("  .amdhsa_system_sgpr_workgroup_id_x 1")
    A("  .amdhsa_float_denorm_mode_32 3")
    A(".end_amdhsa_kernel")
    return "\n".join(L) + "\n"

if __name__ == "__main__":
    kw = eval("dict(" + (sys.argv[2] if len(sys.argv) > 2 else "") + ")")
    open(sys.argv[1], "w").write(gen(**kw))
```

```python
import sys, math, struct
KNAME = "standalone__kv_cache_quant_pre_rope_vs_post_rope__sampling_kernel"
HEADER = open("standalone__kv_cache_quant_pre_rope_vs_post_rope__sampling.s.ref").read().split("; Override launch")[0]

def f2u(x):
    return struct.unpack("<I", struct.pack("<f", x))[0]

def gen(DK=40, DW0=22,   LAG=2, pad=0, IDEAL=None, TB=((0, 20), (-10, 22), (6, 24), (13, 27), (20, 40)), K2=3, FS=2, T0=46, HALF=0, bfl='nt', BG=0, FIN=None, AP=0,
        VSU=15, FB=4, F0=3, PC=None, clk=False, touch=0, NSET=1, SLP=4, ROT=1, xfl='sc1', EARLY=1, HM=8, HV=None, l2pf=1, spin=1 << 22, outfl="", first=0,
        stamps=False, align=False, probe=None, nostore=False, static=False):
    cst = stamps
    stamps = stamps or align
    assert 17 <= DK <= 48
    nt = "nt"
    levels = set([DW0]) | set(d for _, d in TB)
    levels = [DW0] + sorted(levels - {DW0, DK})
    assert all(17 <= d <= 32 for d in levels)
    L = []
    def A(s=""):
        L.append(s if (s.endswith(":") or s.startswith(".") or s.startswith(";")) else "    " + s)
    RING = 0x18000
    LDS_S = RING
    LDS_SC = LDS_S + 0x8000
    LDS_Q = LDS_SC + 0x2000
    LDS_MX = LDS_Q + 4096
    LDS_F = LDS_MX + 448
    lds = LDS_F + 64
    WS_ML = 0x200000
    WS_EP = 0x210000
    EPST = 4096 + 256
    WS_BD = 0x240000
    L.append(HEADER.rstrip())
    A(f"; @launch grid=(256,1,1) block=(320,1,1) lds={lds}")
    A('.amdgcn_target "amdgcn-amd-amdhsa--gfx950"')
    A(".text")
    A(f".globl {KNAME}")
    A(".p2align 8")
    A(f".type {KNAME},@function")
    A(f"{KNAME}:")
    A("s_cmp_ge_u32 s2, 256")
    A("s_cbranch_scc1 L_end")
    if align:
        A("s_load_dwordx2 s[40:41], s[0:1], 96")
        A("s_memrealtime s[84:85]")
        A("v_readfirstlane_b32 s3, v0")
        A("s_waitcnt lgkmcnt(0)")
        A("s_cmp_lg_u32 s3, 0")
        A("s_cbranch_scc1 L_al2")
        A("s_add_u32 s86, s84, 800")
        A("s_mov_b32 s88, s86")
        A("s_mov_b32 s87, 0")
        A("s_atomic_cmpswap s[86:87], s[40:41], 0xf0 glc")
        A("s_waitcnt lgkmcnt(0)")
        A("s_cmp_eq_u32 s86, 0")
        A("s_cselect_b32 s86, s88, s86")
        A("L_al1:")
        A("s_memrealtime s[84:85]")
        A("s_waitcnt lgkmcnt(0)")
        A("s_sub_u32 s87, s84, s86")
        A("s_cmp_lt_i32 s87, 0")
        A("s_cbranch_scc1 L_al1")
        A("L_al2:")
        A("s_barrier")
    if stamps or probe:
        A("s_memrealtime s[84:85]")
    A("s_load_dwordx16 s[16:31], s[0:1], 0")
    A("s_load_dwordx8 s[32:39], s[0:1], 64")
    A("s_load_dwordx2 s[42:43], s[0:1], 104")
    A("v_lshrrev_b32 v2, 6, v0")
    A("v_and_b32 v1, 63, v0")
    A("v_readfirstlane_b32 s3, v2")
    A("s_and_b32 s4, s2, 7                        ; member m")
    A("s_lshr_b32 s5, s2, 3                       ; group g")
    if HM == 8:
        A("s_and_b32 s57, s5, 1")
    else:
        A(f"s_and_b32 s57, s2, {HM}")
        A("s_bcnt1_i32_b32 s57, s57")
        A("s_and_b32 s57, s57, 1")
    A(f"s_mul_i32 s56, s5, {EPST}")
    A(f"s_add_u32 s56, s56, {WS_EP}")
    A("v_lshrrev_b32 v2, 3, v1                    ; lane>>3")
    A("v_and_b32 v3, 7, v1                        ; lane&7")
    A("v_lshrrev_b32 v4, 5, v1                    ; lane>>5")
    A(f"v_mov_b32 v23, {LDS_F}")
    A("s_mov_b32 s83, 0")
    A("s_cmp_lg_u32 s3, 0")
    A("s_cbranch_scc1 L_consumer")
    def guard():
        A("s_add_u32 s83, s83, 1")
        A(f"s_cmp_gt_u32 s83, {spin}")
        A("s_cbranch_scc1 L_end")
    A("s_setprio 3")
    for _ in range(pad):
        A("s_nop 0")
    A("v_mov_b32 v6, 0")
    A("v_mov_b32 v7, 0")
    A("v_lshlrev_b32 v24, 2, v1")
    A("v_lshl_add_u32 v18, v1, 6, s5")
    A(f"s_mov_b32 s59, {16 << HALF}")
    A("ds_write_b64 v23, v[6:7] offset:32")
    A("v_xor_b32 v5, v3, v4")
    A("v_lshlrev_b32 v5, 4, v5")
    A("v_lshl_add_u32 v10, v2, 12, v5")
    A("v_lshlrev_b32 v5, 2, v4")
    A("v_xor_b32 v5, v5, v3")
    A("v_lshlrev_b32 v5, 4, v5")
    A("v_lshl_add_u32 v11, v2, 11, v5")
    A("s_lshl_b32 s7, s5, 22")
    A("s_lshl_b32 s6, s4, 15")
    A("s_add_u32 s7, s7, s6                       ; g*4M + m*32K")
    A("s_sub_u32 s10, 0x400000, s6")
    A("s_mov_b32 s11, 0x00020000")
    A("s_lshr_b32 s6, s6, 1")
    A("s_sub_u32 s14, 0x100000, s6")
    A("s_mov_b32 s15, 0x00020000")
    A("s_mov_b32 s62, s14")
    A("s_mov_b32 s63, 0x00020000")
    A("s_lshl_b32 s44, s57, 11")
    A("s_lshl_b32 s45, s57, 12")
    A("s_sub_u32 s45, 2048, s45")
    A("s_mov_b32 s46, 0")
    A("s_mov_b32 s47, 0")
    A("s_mov_b32 s48, 0")
    if cst:
        A("s_mov_b32 s79, 0")
        A("s_mov_b32 s50, 0")
    for i in range(12, 16):
        A(f"v_mov_b32 v{i}, 0")
    A("s_waitcnt lgkmcnt(0)")
    A("s_add_u32 s8, s18, s7")
    A("s_addc_u32 s9, s19, 0")
    A("s_add_u32 s12, s34, s6")
    A("s_addc_u32 s13, s35, 0")
    A("s_add_u32 s60, s36, s6")
    A("s_addc_u32 s61, s37, 0")
    A(f"s_mul_i32 s6, s4, {EPST}")
    A(f"s_add_u32 s6, s6, {WS_BD}")
    A("s_add_u32 s64, s42, s6")
    A("s_addc_u32 s65, s43, 0")
    A("s_add_u32 s68, s24, s7")
    A("s_addc_u32 s69, s25, 0")
    A("s_mov_b32 s66, 64")
    A("s_mov_b32 s67, 0x00020000")
    def post():
        A("v_mov_b32 v19, s59")
        A("buffer_store_byte v19, v18, s[64:67], 0 offen")
    cnt = [0]
    def stamp():
        if probe:
            A(f"s_cmp_lg_u32 s47, {probe[0]}")
            A(f"s_cbranch_scc1 L_pr{cnt[0]}")
            A("s_memrealtime s[70:71]")
            A(f"L_pr{cnt[0]}:")
            cnt[0] += 1
        if cst:
            flush()
            A("s_memrealtime s[50:51]")
            A("s_mov_b32 s79, s47")
    def flush():
        A("s_lshl_b64 exec, 1, s79")
        A("s_cmp_lt_u32 s79, 64")
        A(f"s_cbranch_scc0 L_st{cnt[0]}")
        A("v_mov_b32 v8, s50")
        A(f"s_branch L_su{cnt[0]}")
        A(f"L_st{cnt[0]}:")
        A("v_mov_b32 v9, s50")
        A(f"L_su{cnt[0]}:")
        A("s_mov_b64 exec, -1")
        cnt[0] += 1
    def publish():
        stamp()
        A("v_mov_b32 v6, s47")
        A("ds_write_b32 v23, v6 offset:32")
    stalls = []
    def free_check(name):
        A("v_min3_u32 v7, v12, v13, v14")
        A("v_min_u32 v7, v7, v15")
        A("s_sub_u32 s52, s46, 5")
        A("v_readfirstlane_b32 s53, v7")
        A("s_mov_b32 m0, s48")
        A("s_cmp_lt_i32 s53, s52")
        A(f"s_cbranch_scc1 L_{name}_full")
        stalls.append(name)
    seq = [("c", 8 + i) for i in range(8)] + [("k", i) for i in range(16)] + [("c", i) for i in range(8)] + [("k", 16 + i) for i in range(16)]
    if first == 1:
        seq = [("k", i) for i in range(8)] + [("c", 8 + i) for i in range(8)] + [("k", 8 + i) for i in range(8)] + [("c", i) for i in range(8)] + [("k", 16 + i) for i in range(16)]
    for bi, name in enumerate(("k0", "k1", "k2")):
        A(f"L_{name}:")
        if bi == 0:
            A("s_lshr_b32 s49, s44, 1")
            A("s_add_u32 s54, s44, 0x200000")
        free_check(name)
        for p in range(16):
            ty, ix = seq[bi * 16 + p]
            if ty == "k":
                lo = (0 if ix < 16 else 0x8000) + (ix & 15) * 896
            else:
                lo = 0x4000 + (ix >> 3) * 8192 + (ix & 7) * 896
            if p and seq[bi * 16 + p - 1] == (ty, ix - 1) and (ix & (15 if ty == "k" else 7)):
                A("s_addk_i32 m0, 0x380")
            elif lo != bi * 0x4000 or p:
                A(f"s_add_u32 m0, s48, {hex((lo - bi * 0x4000) & 0xffffffff)}")
            A(f"s_waitcnt vmcnt({DK-1})")
            if p == (DK - 17) % 16:
                if DK > 32:
                    A("s_sub_u32 s47, s47, 1")
                    A("s_max_i32 s47, s47, 0")
                publish()
            if p == 13:
                A("ds_read_b128 v[12:15], v23")
            if p == 8 and bi == 2 and HALF:
                A("s_add_u32 s59, s59, 1")
                post()
            if ty == "k":
                A(f"buffer_load_dwordx4 v10, s[8:11], {'s44' if ix < 16 else 's54'} offen offset:{128*(ix&15)} {nt} lds")
            else:
                A(f"buffer_load_dwordx4 v11, {'s[12:15]' if ix < 8 else 's[60:63]'}, s49 offen offset:{128*(ix&7)} lds")
        if bi == 2:
            A("s_cmp_ge_u32 s46, 48")
            A("s_cbranch_scc1 L_vnext")
        A("s_mov_b32 s47, s46")
        A("s_add_u32 s46, s46, 1")
        A("s_add_u32 s48, s48, 0x4000")
        if bi == 0:
            A("s_cmp_lg_u32 s46, 1")
            A("s_cbranch_scc1 L_k1")
            A("s_barrier")
            A("s_load_dwordx2 s[72:73], s[42:43], s56")
            A("v_mov_b32 v19, 0")
            A("buffer_store_byte v19, v18, s[64:67], 0 offen offset:32")
    A(f"s_cmp_eq_u32 s48, {RING}")
    A("s_cselect_b32 s48, 0, s48")
    A("s_add_u32 s44, s44, s45")
    A("s_sub_u32 s45, 0x40000, s45")
    A(f"s_add_u32 s59, s59, {3 if HALF else 2}")
    A("s_cmp_eq_u32 s46, 48")
    A("s_cbranch_scc1 L_tov")
    post()
    A("s_cmp_lg_u32 s46, 45")
    A("s_cbranch_scc1 L_k0")
    A(f"buffer_load_dword v22, v24, s[64:67], 0 offen {bfl}")
    A("s_branch L_k0")
    A("L_tov:")
    A("s_mov_b32 s8, s68")
    A("s_mov_b32 s9, s69")
    def rehalf():
        if HV is not None:
            A(f"s_and_b32 s57, s2, {HV}")
            A("s_bcnt1_i32_b32 s57, s57")
            A("s_and_b32 s57, s57, 1")
    rehalf()
    if HV is not None:
        A("s_lshl_b32 s45, s57, 12")
        A("s_sub_u32 s45, 2048, s45")
    A("s_lshl_b32 s44, s57, 11")
    A("s_mov_b32 s54, s44")
    A(f"s_add_u32 s55, s5, {T0}")
    A("s_max_u32 s55, s55, 49")
    A(f"s_min_u32 s55, s55, {79 - LAG}")
    A("s_mov_b32 s78, s55")
    A("s_lshr_b32 s77, s5, 2")
    A("s_and_b32 s75, s5, 3")
    A("s_lshl_b32 s75, s75, 3")
    A("s_mov_b32 s70, 0")
    A("s_mov_b32 s71, 0")
    A("s_waitcnt lgkmcnt(0)")
    A("L_v:")
    A("v_mov_b32 v21, v22")
    A(f"s_ashr_i32 s53, s70, {FS}")
    A("v_sad_u8 v20, v21, 0, 0")
    A("v_readlane_b32 s76, v21, s77")
    A("s_sub_u32 s70, s70, s53")
    A("v_add_u32_dpp v20, v20, v20 quad_perm:[1,0,3,2] row_mask:0xf bank_mask:0xf")
    A("s_lshr_b32 s76, s76, s75")
    A("s_and_b32 s76, s76, 0xff")
    A("v_add_u32_dpp v20, v20, v20 quad_perm:[2,3,0,1] row_mask:0xf bank_mask:0xf")
    A("s_lshl_b32 s76, s76, 5")
    A("s_sub_u32 s76, s76, 16")
    A("v_add_u32_dpp v20, v20, v20 row_half_mirror row_mask:0xf bank_mask:0xf")
    A("s_nop 0")
    A("v_readlane_b32 s6, v20, 0")
    A("v_readlane_b32 s52, v20, 8")
    A("s_sub_u32 s6, s6, s76")
    A("s_sub_u32 s53, s52, s71")
    A("s_mov_b32 s71, s52")
    A("s_lshr_b32 s52, s53, 5")
    A("s_mul_i32 s52, s52, 71")
    A("s_lshl_b32 s53, s53, 1")
    A("s_sub_u32 s53, s53, s52")
    A(f"s_mul_i32 s53, s53, {K2}")
    A("s_add_u32 s70, s70, s53")
    A("s_ashr_i32 s53, s70, 2")
    A("s_add_u32 s6, s6, s53")
    A(f"s_mov_b32 s58, {TB[0][1]}")
    for thr, d in TB[1:]:
        A(f"s_cmp_gt_i32 s6, {thr}")
        A(f"s_cselect_b32 s58, {d}, s58")
    if FIN:
        A(f"s_cmp_ge_u32 s46, {FIN[0]}")
        A(f"s_cselect_b32 s6, {FIN[1]}, 0")
        A("s_max_u32 s58, s58, s6")
    A("L_vpost:")
    post()
    A(f"buffer_load_dword v22, v24, s[64:67], 0 offen {bfl}")
    def vbody(D):
        free_check(f"v{D}")
        for p in range(16):
            if p:
                A("s_addk_i32 m0, 0x380")
            A(f"s_waitcnt vmcnt({D-1})")
            if p == D - 17:
                publish()
            if p == 13:
                A("ds_read_b128 v[12:15], v23")
            if p == 8 and HALF:
                A("s_add_u32 s59, s59, 1")
                post()
            A(f"buffer_load_dwordx4 v10, s[8:11], s54 offen offset:{128*p} {nt} lds")
    A(f"s_cmp_lg_u32 s58, {DW0}")
    A("s_cbranch_scc1 L_vsel")
    A(f"L_v{DW0}:")
    vbody(DW0)
    A("L_vnext:")
    A("s_add_u32 s59, s59, 1")
    A("s_mov_b32 s47, s46")
    A("s_add_u32 s46, s46, 1")
    A("s_add_u32 s48, s48, 0x4000")
    A(f"s_cmp_eq_u32 s48, {RING}")
    A("s_cselect_b32 s48, 0, s48")
    A("s_add_u32 s54, s44, 0x200000")
    A("s_bitcmp1_b32 s46, 0")
    A("s_cbranch_scc1 L_vb")
    A("s_add_u32 s44, s44, s45")
    A("s_sub_u32 s45, 0x40000, s45")
    A("s_mov_b32 s54, s44")
    A("L_vb:")
    A("s_cmp_lg_u32 s46, s55")
    A("s_cbranch_scc1 L_v")
    A("s_cmp_eq_u32 s46, 80")
    A("s_cbranch_scc1 L_ldone")
    A("s_cmp_lg_u32 s46, s78")
    A("s_cbranch_scc1 L_rank")
    A("s_mov_b32 s74, 1")
    A("s_add_u32 s6, s56, 4")
    if not static:
        A("s_atomic_add s74, s[42:43], s6 glc")
    A(f"s_add_u32 s55, s55, {LAG}")
    A("s_branch L_v")
    A("L_rank:")
    A("s_waitcnt lgkmcnt(0)")
    A("s_sub_u32 s6, s74, s73")
    A("s_and_b32 s6, s6, 7")
    A("s_or_b32 s6, s6, 32")
    A("v_mov_b32 v19, s6")
    A("buffer_store_byte v19, v18, s[64:67], 0 offen offset:32")
    A("s_mov_b32 s55, 80")
    A("s_branch L_v")
    A("L_ldone:")
    A("s_cmp_lg_u32 s4, 0")
    A("s_cbranch_scc1 L_noep")
    A("s_mov_b32 s74, 1")
    A("s_atomic_add s74, s[42:43], s56")
    A("L_noep:")
    A("v_mov_b32 v6, 78")
    A("s_waitcnt vmcnt(32)")
    A("ds_write_b32 v23, v6 offset:32")
    A("s_waitcnt vmcnt(16)")
    publish()
    A("s_mov_b32 s47, 80")
    A("s_waitcnt vmcnt(8)")
    A("s_barrier")
    A("s_waitcnt vmcnt(0)")
    stamp()
    if align and not cst:
        A("s_memrealtime s[50:51]")
    A("s_barrier")
    if stamps:
        A("s_mov_b32 s60, s42")
        A("s_mov_b32 s61, s43")
        A("s_mov_b32 s62, 0x800000")
        A("s_mov_b32 s63, 0x00020000")
    if align and not cst:
        A("s_lshl_b32 s55, s2, 2")
        A("s_add_u32 s55, s55, 0x500000")
        A("v_mov_b32 v2, 0")
        A("s_waitcnt lgkmcnt(0)")
        A("v_mov_b32 v8, s50")
        A("s_mov_b64 exec, 1")
        A("buffer_store_dword v8, v2, s[60:63], s55 offen")
    if cst:
        A("s_waitcnt lgkmcnt(0)")
        flush()
        A("s_lshl_b32 s55, s2, 10")
        A("s_add_u32 s55, s55, 0x500000")
        A("v_lshlrev_b32 v2, 2, v1")
        A("buffer_store_dword v8, v2, s[60:63], s55 offen")
        A("buffer_store_dword v9, v2, s[60:63], s55 offen offset:256")
        A("v_mov_b32 v10, s83")
        A("buffer_store_dword v10, v2, s[60:63], s55 offen offset:512")
    if probe:
        X, wg, G, base = probe
        if wg is not None:
            A(f"s_cmp_lg_u32 s2, {wg}")
            A("s_cbranch_scc1 L_end")
        A("s_waitcnt lgkmcnt(0)")
        A("s_sub_u32 s70, s70, s84")
        A(f"s_sub_u32 s70, s70, {base}")
        A(f"s_mul_i32 s70, s70, {G}")
        A("s_add_u32 s70, s70, 6000")
        A("s_min_u32 s70, s70, 30000")
        A("L_spin:")
        A("s_memrealtime s[86:87]")
        A("s_waitcnt lgkmcnt(0)")
        A("s_sub_u32 s86, s86, s84")
        A("s_cmp_lt_u32 s86, s70")
        A("s_cbranch_scc1 L_spin")
    A("s_endpgm")
    A("L_vsel:")
    for D in levels[1:]:
        A(f"s_cmp_eq_u32 s58, {D}")
        A(f"s_cbranch_scc1 L_v{D}")
    A("s_branch L_k2")
    for D in levels[1:]:
        A(f"L_v{D}:")
        vbody(D)
        A("s_branch L_vnext")
    for name in stalls:
        A(f"L_{name}_full:")
        A("ds_read_b128 v[12:15], v23")
        guard()
        A("s_waitcnt lgkmcnt(0)")
        A(f"s_branch L_{name}")
    vBK, vAK0, vAK1, vBCS, vACS, vASw, vAKZ, vAKS, vOWS, vOML, vOOUT, vAD = range(6, 18)
    vBV, vAV, vASr, vAVS = vBK, vAK0, vAK1, vAKS
    vM, vL, vL2, vT, vF = 18, 19, 20, 22, 23
    vMB = 21
    vKZ, vKS, vU, vS = 24, 25, 26, 27
    vD = 28; vQ = 32; vA = 48; vX = 56
    vR = 72; vC = 88; vW = 120
    vP = 72; vPP = 80; vVS = 84; vVZ = 32; vVU = 36; vQP = 44; vN = 45; vOG = 46
    vACC = [88, 108]
    vDA = 72; vZ = 76; vY = 84; vTm = 36; vML = 72; vMA = 40
    vQL = 136
    NV = 152
    SWS, SOUT, ST = 68, 72, 76
    sEP = 82
    def r(a, n):
        return f"v[{a}:{a+n-1}]"
    def srd(s):
        return f"s[{s}:{s+3}]"
    def mksrd(s, ptr, size):
        A(f"s_mov_b32 s{s}, s{ptr}")
        A(f"s_mov_b32 s{s+1}, s{ptr+1}")
        A(f"s_mov_b32 s{s+2}, {size}")
        A(f"s_mov_b32 s{s+3}, 0x00020000")
    def unpack(dst, src, n):
        for i in range(n):
            A(f"v_lshlrev_b32 v{dst+2*i}, 16, v{src+i}")
            A(f"v_and_b32 v{dst+2*i+1}, s80, v{src+i}")
    def rope(i0, i1, dst):
        Clo, Chi, Slo, Shi = vC, vC + 8, vC + 16, vC + 24
        for i in range(i0, i1, 2):
            A(f"v_pk_mul_f32 {r(vW+i,2)}, {r(vX+i,2)}, {r(Clo+i,2)}")
            A(f"v_pk_mul_f32 {r(vW+8+i,2)}, {r(vX+8+i,2)}, {r(Chi+i,2)}")
        for i in range(i0, i1, 2):
            A(f"v_pk_fma_f32 {r(vW+i,2)}, {r(vX+8+i,2)}, {r(Slo+i,2)}, {r(vW+i,2)} neg_lo:[1,0,0] neg_hi:[1,0,0]")
            A(f"v_pk_fma_f32 {r(vW+8+i,2)}, {r(vX+i,2)}, {r(Shi+i,2)}, {r(vW+8+i,2)}")
        for i in range(i0, i1, 2):
            A(f"v_cvt_pk_bf16_f32 v{dst+i//2}, v{vW+i}, v{vW+i+1}")
            A(f"v_cvt_pk_bf16_f32 v{dst+4+i//2}, v{vW+8+i}, v{vW+8+i+1}")
    wl = [0]
    def wait_landed():
        k = wl[0]; wl[0] += 1
        A("s_cmp_gt_u32 s13, s12")
        A(f"s_cbranch_scc1 L_wl{k}_ok")
        A(f"L_wl{k}:")
        A(f"ds_read_b32 v{vT}, v{vF} offset:32")
        guard()
        A("s_waitcnt lgkmcnt(0)")
        A(f"v_readfirstlane_b32 s13, v{vT}")
        A("s_cmp_gt_u32 s13, s12")
        A(f"s_cbranch_scc0 L_wl{k}")
        A(f"L_wl{k}_ok:")
    def set_done(inc):
        A("s_add_u32 s6, s12, 1")
        A(f"v_mov_b32 v{vT}, s6")
        A(f"ds_write_b32 v{vAD}, v{vT}")
        A(f"s_add_u32 s12, s12, {inc}")
    def wg_sync(val):
        k = wl[0]; wl[0] += 1
        A(f"v_mov_b32 v{vT}, {val}")
        A("s_waitcnt vmcnt(0) lgkmcnt(0)")
        A(f"ds_write_b32 v{vAD}, v{vT} offset:16")
        A(f"L_ws{k}:")
        A(f"ds_read_b128 {r(vD,4)}, v{vF} offset:16")
        guard()
        A("s_waitcnt lgkmcnt(0)")
        A(f"v_min3_u32 v{vT}, v{vD}, v{vD+1}, v{vD+2}")
        A(f"v_min_u32 v{vT}, v{vT}, v{vD+3}")
        A("s_nop 0")
        A(f"v_readfirstlane_b32 s6, v{vT}")
        A(f"s_cmp_ge_u32 s6, {val}")
        A(f"s_cbranch_scc0 L_ws{k}")
    def scales(ptrs, base):
        A(f"v_lshlrev_b32 v{vT}, 4, v3")
        A(f"v_lshl_add_u32 v{vT}, v2, 10, v{vT}")
        A("s_lshl_b32 s6, s5, 14")
        A("s_lshl_b32 s7, s4, 7")
        A("s_add_u32 s6, s6, s7")
        A("s_add_u32 s7, s6, 8192")
        A(f"s_mov_b32 s{ST+2}, 0x80000")
        for k, ptr in enumerate(ptrs):
            A(f"s_mov_b32 m0, {base + k*2048}")
            A(f"s_mov_b32 s{ST}, s{ptr}")
            A(f"s_mov_b32 s{ST+1}, s{ptr+1}")
            A(f"buffer_load_dwordx4 v{vT}, {srd(ST)}, s6 offen lds")
            A("s_addk_i32 m0, 0x400")
            A("s_nop 0")
            A(f"buffer_load_dwordx4 v{vT}, {srd(ST)}, s7 offen lds")
    def fly(op, x, t):
        A(f"v_{op}_f32_dpp v{x}, v{x}, v{x} row_ror:8 row_mask:0xf bank_mask:0xf")
        A(f"v_mov_b32 v{t}, v{x}")
        A("s_nop 1")
        A(f"v_permlane16_swap_b32 v{x}, v{t}")
        A(f"v_{op}_f32 v{x}, v{x}, v{t}")
        A(f"v_mov_b32 v{t}, v{x}")
        A("s_nop 1")
        A(f"v_permlane32_swap_b32 v{x}, v{t}")
        A(f"v_{op}_f32 v{x}, v{x}, v{t}")

    A("L_consumer:")
    A("s_sub_u32 s3, s3, 1                        ; w")
    A("s_mov_b32 s80, 0xffff0000")
    A(f"s_mov_b32 s81, {hex(f2u(128 ** -0.5 * math.log2(math.e)))}")
    A("s_lshl_b32 s14, s5, 12")
    A(f"v_lshlrev_b32 v{vOWS}, 4, v1")
    A(f"s_mov_b32 s{ST+3}, 0x00020000")
    A("s_lshl_b32 s7, s3, 2")
    A(f"v_add_u32 v{vAD}, s7, v{vF}")
    A(f"v_mov_b32 v{vKZ}, 0")
    A(f"ds_write_b32 v{vAD}, v{vKZ}")
    A(f"ds_write_b32 v{vAD}, v{vKZ} offset:16")
    A("s_waitcnt lgkmcnt(0)")
    A("s_barrier")
    A(f"s_load_dword s{sEP}, s[42:43], s56")
    A("s_cmp_lg_u32 s3, 0")
    A("s_cbranch_scc1 L_notq")
    A(f"v_lshlrev_b32 v{vT}, 4, v3")
    A(f"v_lshl_add_u32 v{vT}, v2, 8, v{vT}          ; q*256 + e*16")
    A(f"s_mov_b32 s{ST}, s30")
    A(f"s_mov_b32 s{ST+1}, s31")
    A(f"s_mov_b32 s{ST+2}, 2048")
    A(f"buffer_load_dwordx4 {r(vR,4)}, v{vT}, {srd(ST)}, 0 offen")
    A(f"buffer_load_dwordx4 {r(vR+4,4)}, v{vT}, {srd(ST)}, 0 offen offset:128")
    A(f"s_mov_b32 s{ST}, s32")
    A(f"s_mov_b32 s{ST+1}, s33")
    A(f"buffer_load_dwordx4 {r(vR+8,4)}, v{vT}, {srd(ST)}, 0 offen")
    A(f"buffer_load_dwordx4 {r(vR+12,4)}, v{vT}, {srd(ST)}, 0 offen offset:128")
    A(f"s_mov_b32 s{ST}, s16")
    A(f"s_mov_b32 s{ST+1}, s17")
    A(f"s_mov_b32 s{ST+2}, 131072")
    for k in range(4):
        A(f"buffer_load_dwordx4 {r(vQL+4*k,4)}, v{vT}, {srd(ST)}, s14 offen offset:{(k >> 1)*2048 + (k & 1)*128}")
    A("s_branch L_roles")
    A("L_notq:")
    A("s_cmp_lg_u32 s3, 1")
    A("s_cbranch_scc1 L_notsc")
    scales((22, 20), LDS_SC)
    A("s_branch L_roles")
    A("L_notsc:")
    if l2pf:
        A("s_cmp_lg_u32 s3, 2")
        A("s_cbranch_scc1 L_roles")
        A("s_lshr_b32 s6, s5, 2")
        A("s_lshl_b32 s6, s6, 3")
        A("s_add_u32 s6, s6, s4")
        A("s_lshl_b32 s6, s6, 14")
        A("s_and_b32 s7, s5, 3")
        A("s_lshl_b32 s7, s7, 12")
        A("s_add_u32 s6, s6, s7")
        A(f"v_lshlrev_b32 v{vT}, 7, v1")
        A(f"s_mov_b32 s{ST}, s34")
        A(f"s_mov_b32 s{ST+1}, s35")
        A(f"s_mov_b32 s{ST+2}, 0x100000")
        A("s_mov_b32 exec_hi, 0")
        A(f"buffer_load_dword v{vQL}, v{vT}, {srd(ST)}, s6 offen")
        A(f"s_mov_b32 s{ST}, s36")
        A(f"s_mov_b32 s{ST+1}, s37")
        A(f"buffer_load_dword v{vQL+1}, v{vT}, {srd(ST)}, s6 offen")
        A("s_mov_b64 exec, -1")
    A("L_roles:")
    A("v_bfe_u32 v5, v1, 1, 3")
    A("s_lshl_b32 s6, s57, 2")
    A("s_add_u32 s6, s6, s3")
    A(f"v_lshl_add_u32 v{vAKZ}, v5, 3, s6")
    A(f"v_lshlrev_b32 v{vAKZ}, 1, v{vAKZ}")
    A(f"v_add_u32 v{vAKZ}, {LDS_SC}, v{vAKZ}")
    A(f"v_lshl_add_u32 v{vAKS}, v2, 3, s6")
    A(f"v_lshlrev_b32 v{vAKS}, 1, v{vAKS}")
    A(f"v_add_u32 v{vAKS}, {LDS_SC + 2048}, v{vAKS}")
    A(f"v_lshrrev_b32 v{vT}, 4, v1")
    A(f"v_and_b32 v{vU}, 1, v1")
    A(f"v_lshl_add_u32 v{vT}, v{vT}, 1, v{vU}       ; e = 2g+a")
    A(f"v_and_b32 v{vU}, 4, v5")
    A(f"v_xor_b32 v{vU}, v{vU}, v{vT}")
    A(f"v_lshlrev_b32 v{vU}, 4, v{vU}")
    A(f"v_lshl_add_u32 v{vBCS}, v5, 7, v{vU}")
    A("s_lshl_b32 s7, s3, 11")
    A("s_add_u32 s7, s7, 0x4000")
    A(f"v_add_u32 v{vBCS}, s7, v{vBCS}")
    A("s_lshl_b32 s7, s3, 12")
    A(f"v_lshlrev_b32 v{vBK}, 10, v4               ; (g>>1)*1024")
    A(f"v_lshl_add_u32 v{vBK}, v5, 7, v{vBK}        ; + rho*128")
    A(f"v_and_b32 v{vT}, 3, v{vT}")
    A(f"v_lshl_add_u32 v{vBK}, v{vT}, 5, v{vBK}     ; + (e&3)*32")
    A(f"v_lshrrev_b32 v{vT}, 2, v5")
    A(f"v_lshl_add_u32 v{vBK}, v{vT}, 4, v{vBK}     ; + (rho>>2)*16")
    A(f"v_add_u32 v{vBK}, s7, v{vBK}")
    A("s_lshl_b32 s7, s3, 2")
    A("s_lshl_b32 s6, s57, 10")
    A("s_add_u32 s7, s7, s6")
    A(f"s_add_u32 s7, s7, {LDS_S}")
    A(f"v_add_u32 v{vASw}, s7, v{vOWS}")
    A(f"v_mov_b32 v{vKS}, 0")
    A(f"v_mov_b32 v{vM}, 0xff7fffff")
    A(f"v_mov_b32 v{vMB}, 0xff7fffff")
    A("s_mov_b32 s12, 1")
    A("s_mov_b32 s13, 0")
    A("s_mov_b32 s8, 0")
    A("s_lshl_b32 s9, s57, 4")
    A("s_sub_u32 s9, 8, s9")
    A("s_lshl_b32 s11, s57, 11")
    A("s_add_u32 s11, s11, 1024")
    A("s_cmp_eq_u32 s3, 2")
    A(f"s_cselect_b32 s10, {3 * VSU + 1}, 0")
    if touch:
        A("s_cmp_eq_u32 s3, 0")
        A(f"s_cselect_b32 s10, {3 * touch + 1}, s10")
    A("s_cmp_lg_u32 s3, 0")
    A("s_cbranch_scc1 L_qdone")
    A("s_waitcnt vmcnt(4)")
    unpack(vC, vR, 16)
    A(f"v_lshl_add_u32 v{vT}, v3, 3, v2")
    A(f"v_lshlrev_b32 v{vT}, 4, v{vT}")
    A(f"v_add_u32 v{vT}, {LDS_Q}, v{vT}")
    for hb in range(2):
        A(f"s_waitcnt vmcnt({2 - 2*hb})")
        unpack(vX, vQL + 8 * hb, 8)
        rope(0, 8, vQ + 8 * hb)
        A(f"ds_write_b128 v{vT}, {r(vQ+8*hb,4)} offset:{2048*hb}")
        A(f"ds_write_b128 v{vT}, {r(vQ+8*hb+4,4)} offset:{2048*hb+1024}")
    A("L_qdone:")
    wg_sync(1)
    A(f"v_add_u32 v{vU}, {LDS_Q}, v{vOWS}")
    for k in range(4):
        A(f"ds_read_b128 {r(vQ+4*k,4)}, v{vU} offset:{k*1024}")
    A("L_kunit:")
    A("s_sub_u32 s11, 2048, s11")
    A(f"v_add_u32 v{vAK0}, s8, v{vBK}")
    A(f"v_add_u32 v{vACS}, s8, v{vBCS}")
    A(f"v_xor_b32 v{vAK1}, 16, v{vAK0}")
    A("s_cmp_eq_u32 s12, s10")
    A("s_cbranch_scc1 L_vscales")
    A("L_kgo:")
    for hb in range(2):
        wait_landed()
        o = hb * 0x8000
        if hb == 0:
            for part in range(4):
                A(f"ds_read_b128 {r(vR+4*part,4)}, v{vACS} offset:{(part >> 1)*8192 + (part & 1)*1024}")
        A(f"ds_read_b128 {r(vX,4)}, v{vAK0} offset:{o}")
        A(f"ds_read_b128 {r(vX+8,4)}, v{vAK0} offset:{o+2048}")
        A(f"ds_read_u16_d16_hi v{vKZ}, v{vAKZ} offset:{hb*1024}")
        A(f"ds_read_b128 {r(vX+4,4)}, v{vAK1} offset:{o}")
        A(f"ds_read_b128 {r(vX+12,4)}, v{vAK1} offset:{o+2048}")
        A(f"ds_read_u16_d16_hi v{vKS}, v{vAKS} offset:{hb*1024}")
        if hb == 0:
            A("s_waitcnt lgkmcnt(8)")
            unpack(vC, vR, 8)
            A("s_waitcnt lgkmcnt(0)")
            set_done(1)
            unpack(vC + 16, vR + 8, 8)
        for part in range(2):
            if hb == 1:
                A(f"s_waitcnt lgkmcnt({3 if part == 0 else 0})")
                if part == 1:
                    set_done(2)
            for b in (vX + 4 * part, vX + 8 + 4 * part):
                for i in range(4):
                    A(f"v_cvt_f32_i32 v{b+i}, v{b+i}")
            for b in (vX + 4 * part, vX + 8 + 4 * part):
                for i in (0, 2):
                    A(f"v_pk_add_f32 {r(b+i,2)}, {r(b+i,2)}, {r(vKZ,2)} op_sel_hi:[1,0] neg_lo:[0,1] neg_hi:[0,1]")
            rope(4 * part, 4 * part + 4, vA)
        A(f"v_mul_f32 v{vU}, s81, v{vKS}")
        A("s_nop 0")
        A(f"v_mfma_f32_16x16x32_bf16 {r(vD,4)}, {r(vA,4)}, {r(vQ+8*hb,4)}, 0")
        A(f"v_mfma_f32_16x16x32_bf16 {r(vD,4)}, {r(vA+4,4)}, {r(vQ+8*hb+4,4)}, {r(vD,4)}")
        if hb:
            A(f"v_add_u32 v{vAKZ}, s9, v{vAKZ}")
            A(f"v_add_u32 v{vAKS}, s9, v{vAKS}")
            A("s_sub_u32 s9, 128, s9")
            A("s_sub_u32 s8, 0xc000, s8")
            A("s_cmp_lt_u32 s12, 48")
            A("s_nop 2")
        else:
            A("s_nop 7")
        A(f"v_add_f32_dpp v{vS}, v{vD+1}, v{vD} row_ror:8 row_mask:0xf bank_mask:0x3")
        A(f"v_add_f32_dpp v{vS}, v{vD+2}, v{vD+3} row_ror:8 row_mask:0xf bank_mask:0xc")
        A(f"v_mul_f32 v{vS}, v{vS}, v{vU}")
        A(f"ds_write_b32 v{vASw}, v{vS} offset:{hb*16384}")
        A(f"v_max_f32 v{vMB if hb else vM}, v{vMB if hb else vM}, v{vS}")
    A(f"v_add_u32 v{vASw}, s11, v{vASw}")
    A("s_cbranch_scc1 L_kunit")
    A("s_mov_b32 s12, 48")
    A(f"v_max_f32_dpp v{vM}, v{vM}, v{vM} row_ror:8 row_mask:0xf bank_mask:0xf")
    A(f"v_max_f32_dpp v{vMB}, v{vMB}, v{vMB} row_ror:8 row_mask:0xf bank_mask:0xf")
    A(f"v_mov_b32 v{vU}, v{vM}")
    A(f"v_mov_b32 v{vS}, v{vMB}")
    A("v_lshlrev_b32 v5, 4, v3")
    A(f"v_add_u32 v5, {LDS_MX}, v5")
    A(f"v_permlane16_swap_b32 v{vM}, v{vU}")
    A(f"v_permlane16_swap_b32 v{vMB}, v{vS}")
    A(f"v_max_f32 v{vM}, v{vM}, v{vU}")
    A(f"v_max_f32 v{vMB}, v{vMB}, v{vS}")
    A(f"v_mov_b32 v{vU}, v{vM}")
    A(f"v_mov_b32 v{vS}, v{vMB}")
    A("s_lshl_b32 s7, s3, 2")
    A(f"v_add_u32 v{vKZ}, s7, v5")
    A(f"v_permlane32_swap_b32 v{vM}, v{vU}")
    A(f"v_permlane32_swap_b32 v{vMB}, v{vS}")
    A(f"v_max_f32 v{vM}, v{vM}, v{vU}")
    A(f"v_max_f32 v{vMB}, v{vMB}, v{vS}")
    A(f"ds_write_b32 v{vKZ}, v{vM}")
    A(f"ds_write_b32 v{vKZ}, v{vMB} offset:128")
    A(f"v_lshlrev_b32 v{vBV}, 4, v4")
    A(f"v_xor_b32 v{vBV}, v{vBV}, v{vOWS}")
    A("s_lshl_b32 s7, s3, 10")
    A(f"v_add_u32 v{vBV}, s7, v{vBV}")
    A(f"v_add_u32 v{vASr}, {LDS_S}, v{vOWS}")
    A(f"v_lshlrev_b32 v{vAVS}, 4, v2")
    A(f"v_add_u32 v{vAVS}, {LDS_SC + 4096}, v{vAVS}")
    A(f"v_add_u32 v{vOML}, {WS_ML}, v{vOWS}")
    A("s_lshl_b32 s7, s3, 13")
    A(f"v_add_u32 v{vASw}, s7, v{vASr}")
    A("s_lshl_b32 s7, s3, 9")
    A(f"v_add_u32 v{vACS}, s7, v{vAVS}")
    rehalf()
    if HV is not None:
        A("s_lshl_b32 s9, s57, 4")
        A("s_sub_u32 s9, 8, s9")
    A("s_lshl_b32 s7, s57, 3")
    A(f"v_add_u32 v{vASr}, s7, v{vASr}")
    A(f"v_add_u32 v{vAVS}, s7, v{vAVS}")
    A(f"v_bfe_u32 v{vQP}, v1, 3, 2")
    A(f"v_lshl_add_u32 v{vQP}, v{vQP}, 1, v4")
    A("s_lshl_b32 s7, s3, 7")
    A(f"v_lshl_add_u32 v{vU}, v3, 4, s7             ; w*128 + c*16")
    A(f"v_lshl_add_u32 v{vOWS}, v{vQP}, 9, v{vU}")
    A(f"v_lshl_add_u32 v{vOG}, v{vQP}, 12, v{vU}")
    A(f"v_cmp_ne_u32 s[62:63], s4, v{vQP}")
    A(f"v_bfe_u32 v{vOOUT}, v1, 4, 1")
    A(f"v_lshl_add_u32 v{vOOUT}, v{vOOUT}, 1, v4     ; j = 2*b4 + b5")
    A(f"v_lshrrev_b32 v{vU}, 1, v{vU}")
    A(f"v_lshl_add_u32 v{vOOUT}, v{vOOUT}, 1, v{vU}  ; w*64 + c*8 + j*2")
    A("s_lshl_b32 s7, s4, 8")
    A("s_add_u32 s14, s14, s7")
    A("s_lshl_b32 s66, s5, 16")
    A("s_lshl_b32 s7, s4, 12")
    A("s_add_u32 s10, s66, s7")
    A("s_add_u32 s15, s10, 0x8000")
    A("s_lshl_b32 s7, s4, 9")
    A("s_add_u32 s66, s66, s7")
    A("s_add_u32 s67, s66, 0x8000")
    mksrd(SWS, 42, 0 if nostore else 0x210000)
    mksrd(SOUT, 38, 131072)
    A(f"s_mul_i32 s{sEP}, s{sEP}, 0x9e3779b1")
    A(f"s_add_u32 s{sEP}, s{sEP}, 0x7f4a7c15")
    for i in range(4):
        A(f"s_bfe_u32 s{90+i}, s{sEP}, {hex((8 << 16) | (8 * i))}")
    A(f"v_mov_b32 v{vN}, 0xffffff00")
    A("s_mov_b32 s8, 0")
    A(f"v_mov_b32 v{vL2}, 0")
    A(f"v_mov_b32 v{vL2+1}, 0")
    A("s_lshr_b32 s7, s3, 1")
    A("s_lshl_b32 s6, s7, 7")
    A(f"v_add_u32 v{vKS}, s6, v5")
    wg_sync(2)
    A(f"ds_read_b128 {r(vD,4)}, v{vKS}")
    A("s_mov_b32 s11, 4")
    A("s_waitcnt lgkmcnt(0)")
    A(f"v_max3_f32 v{vM}, v{vD}, v{vD+1}, v{vD+2}")
    A(f"v_max_f32 v{vM}, v{vM}, v{vD+3}")
    A("L_pblk:")
    A(f"ds_read_b128 {r(vP,4)}, v{vASw}")
    A(f"ds_read_b128 {r(vP+4,4)}, v{vASw} offset:1024")
    A(f"ds_read_b128 {r(vVS,4)}, v{vACS}")
    A(f"v_add_u32 v{vACS}, 128, v{vACS}")
    A("s_sub_u32 s11, s11, 1")
    A("s_cmp_lg_u32 s11, 0")
    A("s_waitcnt lgkmcnt(1)")
    for i in range(0, 8, 2):
        A(f"v_pk_add_f32 {r(vP+i,2)}, {r(vP+i,2)}, {r(vM,2)} op_sel_hi:[1,0] neg_lo:[0,1] neg_hi:[0,1]")
    for i in range(8):
        A(f"v_exp_f32 v{vP+i}, v{vP+i}")
    A("s_waitcnt lgkmcnt(0)")
    unpack(vVU, vVS, 4)
    for i in range(0, 8, 2):
        A(f"v_pk_mul_f32 {r(vVU+i,2)}, {r(vVU+i,2)}, {r(vP+i,2)}")
    for i in range(4):
        A(f"v_cvt_pk_bf16_f32 v{vPP+i}, v{vVU+2*i}, v{vVU+2*i+1}")
    A(f"ds_write_b128 v{vASw}, {r(vPP,4)}")
    for i in range(0, 8, 2):
        A(f"v_pk_add_f32 {r(vL2,2)}, {r(vL2,2)}, {r(vP+i,2)}")
    A(f"v_add_u32 v{vASw}, 2048, v{vASw}")
    A("s_cbranch_scc1 L_pblk")
    A(f"v_add_f32 v{vL}, v{vL2}, v{vL2+1}")
    A("s_lshl_b32 s6, s7, 3")
    A("v_add_u32 v5, s6, v5")
    fly("add", vL, vU)
    A(f"ds_write_b32 v{vKZ}, v{vL} offset:256")
    for i in range(40):
        A(f"v_mov_b32 v{vACC[0]+i}, 0")
    wg_sync(3)
    A("s_mov_b32 s11, 79")
    A("s_bitcmp0_b32 s3, 0")
    A("s_cbranch_scc1 L_vunit")
    A(f"s_mov_b32 s11, {48 + 2 * F0 + 1}")
    A(f"ds_read_b64 {r(vL2,2)}, v5 offset:256")
    if clk:
        A("s_memrealtime s[60:61]")
    A("s_lshl_b32 s65, s7, 10")
    A("s_lshl_b32 s6, s5, 11")
    A("s_add_u32 s65, s65, s6")
    A("s_lshl_b32 s6, s4, 7")
    A("s_add_u32 s6, s6, s65")
    A("s_waitcnt lgkmcnt(0)")
    A(f"v_add_f32 v{vL}, v{vL2}, v{vL2+1}")
    A(f"v_mov_b32 v{vL2}, s{sEP}")
    A(f"v_mov_b32 v{vL2+1}, {'s60' if clk else 's83'}")
    A("s_mov_b64 exec, 0xff")
    A(f"buffer_store_dwordx4 {r(vM,4)}, v{vOML}, {srd(SWS)}, s6 offen sc1")
    A("s_mov_b64 exec, -1")
    def vcvt(ts):
        for t in ts:
            for j in range(4):
                A(f"v_cvt_f32_i32 v{vX+4*t+j}, v{vX+4*t+j}")
    def vpack(pr):
        for j in range(4):
            A(f"v_cvt_pk_bf16_f32 v{vA+2*j+pr}, v{vX+8*pr+j}, v{vX+8*pr+4+j}")
    def vmfma(hb):
        for j in range(4):
            A(f"v_mfma_f32_16x16x16_bf16 {r(vACC[hb]+4*j,4)}, {r(vPP+2*hb,2)}, {r(vA+2*j,2)}, {r(vACC[hb]+4*j,4)}")
    def vstage(hb):
        wait_landed()
        if hb == 0 and stamps:
            A(f"ds_read_b32 v{vU}, v{vF} offset:40")
        for t in range(4):
            A(f"ds_read_b128 {r(vX+4*t,4)}, v{vAV} offset:{(4*hb+t)*4096}")
        A("s_waitcnt lgkmcnt(2)")
        if hb == 0 and not EARLY:
            for k in range(2):
                A(f"v_mfma_f32_16x16x16_bf16 {r(vACC[k]+16,4)}, {r(vPP+2*k,2)}, {r(vVZ+2*k,2)}, {r(vACC[k]+16,4)}")
        vcvt([0, 1])
        vpack(0)
        A("s_waitcnt lgkmcnt(0)")
        vcvt([2, 3])
        vpack(1)
        vmfma(hb)
        set_done(1)
        if hb == 0 and stamps:
            A(f"v_readfirstlane_b32 s95, v{vU}")
    A("L_vunit:")
    A(f"ds_read_b64 {r(vPP,2)}, v{vASr}")
    A(f"ds_read_b64 {r(vPP+2,2)}, v{vASr} offset:16384")
    A(f"ds_read_b64 {r(vVZ,2)}, v{vAVS} offset:2048")
    A(f"ds_read_b64 {r(vVZ+2,2)}, v{vAVS} offset:3072")
    A("s_cmp_gt_i32 s9, 64")
    A("s_cselect_b32 s6, 1920, 0")
    A("s_add_u32 s6, s6, s9")
    A(f"v_add_u32 v{vASr}, s6, v{vASr}")
    A(f"v_add_u32 v{vAVS}, s9, v{vAVS}")
    A("s_sub_u32 s9, 128, s9")
    A(f"v_add_u32 v{vAV}, s8, v{vBV}")
    if EARLY:
        A("s_cmp_eq_u32 s12, 78")
        A("s_waitcnt lgkmcnt(0)")
        for k in range(2):
            A(f"v_mfma_f32_16x16x16_bf16 {r(vACC[k]+16,4)}, {r(vPP+2*k,2)}, {r(vVZ+2*k,2)}, {r(vACC[k]+16,4)}")
        A("s_cbranch_scc1 L_pre")
        A("L_vgo:")
    vstage(0)
    A("s_cmp_eq_u32 s12, s11")
    A("s_cbranch_scc1 L_hook")
    A("L_vmid:")
    vstage(1)
    A("s_add_u32 s8, s8, 0x8000")
    A(f"s_cmp_eq_u32 s8, {RING}")
    A("s_cselect_b32 s8, 0, s8")
    A("s_branch L_vunit")
    A("L_vscales:")
    if touch:
        A("s_cmp_lg_u32 s3, 0")
        A("s_cbranch_scc1 L_vsc")
        A("s_lshl_b32 s6, s5, 22")
        A("s_add_u32 s7, s6, 0x200000")
        A("s_load_dword s95, s[24:25], s6")
        A("s_load_dword s95, s[24:25], s7")
        A("s_load_dword s95, s[26:27], 0")
        A("s_load_dword s95, s[28:29], 0")
        A("s_load_dword s95, s[38:39], 0")
        A("s_load_dword s95, s[42:43], 0")
        A("s_waitcnt lgkmcnt(0)")
        A("s_branch L_kgo")
        A("L_vsc:")
    scales((26, 28), LDS_SC + 4096)
    A("s_branch L_kgo")
    A("L_hook:")
    A("s_cmp_eq_u32 s12, 79")
    A("s_cbranch_scc1 L_last")
    A(f"s_cmp_lg_u32 s12, {48 + 2 * F0 + 1}")
    A("s_cbranch_scc1 L_fac")
    A("L_mlre:")
    A(f"buffer_load_dwordx4 {r(vML,4)}, v{vOML}, {srd(SWS)}, s65 offen sc1")
    A("s_add_u32 s11, s12, 2")
    A(f"s_cmp_lt_u32 s12, {48 + 2 * (FB + 1) + 1}")
    A("s_cbranch_scc1 L_vmid")
    guard()
    A("L_fac:")
    A("s_waitcnt vmcnt(0)")
    A(f"v_cmp_ne_u32 vcc, s{sEP}, v{vML+2}")
    A(f"v_mov_b32 v{vS}, v{vML}")
    if not nostore:
        A("s_cbranch_vccnz L_mlre")
    A("s_mov_b32 s11, 79")
    A("s_nop 0")
    fly("max", vS, vU)
    A(f"v_sub_f32 v{vML}, v{vML}, v{vS}")
    A(f"v_sub_f32 v{vM}, v{vM}, v{vS}")
    A(f"v_exp_f32 v{vML}, v{vML}")
    A(f"v_exp_f32 v{vM}, v{vM}")
    A(f"v_mul_f32 v{vML}, v{vML}, v{vML+1}")
    A("s_lshl_b32 s6, s3, 1")
    A(f"s_add_u32 s6, s6, {LDS_MX + 384 - 2}")
    fly("add", vML, vU)
    A(f"v_rcp_f32 v{vML}, v{vML}")
    A(f"v_lshl_add_u32 v{vU}, v3, 3, s6")
    A(f"v_mul_f32 v{vM}, v{vM}, v{vML}")
    A(f"v_mov_b32 v{vT}, 4")
    A(f"ds_write_b32 v{vU}, v{vM}")
    A(f"ds_write_b32 v{vAD}, v{vT} offset:16")
    if PC:
        gup, gdn, dup, ddn, dead = PC
        A("s_cmp_lg_u32 s3, 3")
        A("s_cbranch_scc1 L_vmid")
        A(f"v_sub_u32 v{vML+3}, v{vL2+1}, v{vML+3}")
        A(f"v_cvt_f32_i32 v{vML+3}, v{vML+3}")
        A("s_nop 1")
        fly("add", vML + 3, vU)
        A(f"v_cvt_i32_f32 v{vU}, v{vML+3}")
        A("s_nop 0")
        A(f"v_readfirstlane_b32 s6, v{vU}")
        A("s_ashr_i32 s6, s6, 3")
        if stamps:
            A("s_mov_b32 s94, s6")
        A(f"s_sub_i32 s6, s6, {dead}")
        A("s_cmp_gt_i32 s6, 0")
        A(f"s_cselect_b32 s7, {gup}, {-gdn}")
        A(f"s_cselect_b32 s64, {dup}, {ddn}")
        A("s_mul_i32 s6, s6, s7")
        A("s_lshr_b32 s6, s6, 4")
        A("s_add_u32 s6, s6, s12")
        A("s_add_u32 s6, s6, 2")
        A("s_lshl_b32 s6, s6, 8")
        A("s_or_b32 s6, s6, s64")
        A(f"v_mov_b32 v{vT}, s6")
        A(f"ds_write_b32 v{vF}, v{vT} offset:36")
    A("s_branch L_vmid")
    def finalize(hb, dst):
        a = vACC[hb]
        for j in range(4):
            A(f"v_permlane32_swap_b32 v{a+4*j}, v{a+4*j+1}")
            A(f"v_permlane32_swap_b32 v{a+4*j+2}, v{a+4*j+3}")
        for j in range(4):
            A(f"v_add_f32_dpp v{dst+j}, v{a+4*j+1}, v{a+4*j} row_ror:8 row_mask:0xf bank_mask:0x3")
            A(f"v_add_f32_dpp v{dst+j}, v{a+4*j+2}, v{a+4*j+3} row_ror:8 row_mask:0xf bank_mask:0xc")
        for i in (0, 2):
            A(f"v_pk_mul_f32 {r(dst+i,2)}, {r(dst+i,2)}, {r(vMA,2)} " + ("op_sel:[0,1] op_sel_hi:[1,1]" if hb else "op_sel_hi:[1,0]"))
        for j in range(4):
            A(f"v_and_or_b32 v{dst+j}, v{dst+j}, v{vN}, s{90+j}")
        if hb == 0 and AP:
            return
        A("s_mov_b64 exec, s[62:63]")
        A(f"buffer_store_dwordx4 {r(dst,4)}, v{vOWS}, {srd(SWS)}, {'s15' if hb else 's10'} offen {xfl}")
    def gather(dst, soff):
        A(f"buffer_load_dwordx4 {r(dst,4)}, v{vOG}, {srd(SWS)}, {soff} offen {xfl}")
    def check(src):
        for j in range(4):
            A(f"v_xor_b32 v{vTm+j}, s{90+j}, v{src+j}")
        A(f"v_or3_b32 v{vU}, v{vTm}, v{vTm+1}, v{vTm+2}")
        A(f"v_or_b32 v{vU}, v{vU}, v{vTm+3}")
        A(f"v_cmp_ne_u32_sdwa vcc, v{vU}, v{vS} src0_sel:BYTE_0 src1_sel:DWORD")
    def regather(dst, soff):
        if stamps:
            A("s_add_u32 s11, s11, 1")
        A("s_mov_b64 exec, vcc")
        gather(dst, soff)
        A("s_mov_b64 exec, -1")
        guard()
    def reduce_store(off, keep=None):
        A(f"v_permlane32_swap_b32 v{vTm}, v{vTm+1}")
        A(f"v_permlane32_swap_b32 v{vTm+2}, v{vTm+3}")
        A(f"v_add_f32 v{vTm}, v{vTm}, v{vTm+1}")
        A(f"v_add_f32 v{vTm+2}, v{vTm+2}, v{vTm+3}")
        A("s_nop 1")
        A(f"v_permlane16_swap_b32 v{vTm}, v{vTm+2}")
        A(f"v_add_f32 v{vTm}, v{vTm}, v{vTm+2}")
        A("s_nop 1")
        A(f"v_add_f32_dpp v{vTm}, v{vTm}, v{vTm} row_ror:8 row_mask:0xf bank_mask:0xf")
        if keep is not None:
            A(f"v_cvt_pk_bf16_f32 v{keep}, v{vTm}, v{vTm}")
            return
        A(f"v_cvt_pk_bf16_f32 v{vU}, v{vTm}, v{vTm}")
        A("s_mov_b64 exec, s[64:65]")
        A(f"buffer_store_short v{vU}, v{vOOUT}, {srd(SOUT)}, s14 offen offset:{off} {outfl}")
    A("L_pre:" if EARLY else "L_last:")
    A(f"v_lshlrev_b32 v{vU}, 3, v{vQP}")
    A(f"v_add_u32 v{vU}, {LDS_MX + 384}, v{vU}")
    A("L_fw:")
    A(f"ds_read_b128 {r(vD,4)}, v{vF} offset:16")
    A(f"ds_read_b64 {r(vMA,2)}, v{vU}")
    guard()
    A("s_waitcnt lgkmcnt(0)")
    A(f"v_min_u32 v{vT}, v{vD+1}, v{vD+3}")
    A("s_mov_b32 s64, 0x00ff00ff")
    A(f"v_readfirstlane_b32 s6, v{vT}")
    A("s_mov_b32 s65, 0x00ff00ff")
    A("s_cmp_ge_u32 s6, 4")
    A("s_cbranch_scc0 L_fw")
    for hb in range(2):
        for i in range(0, 16, 2):
            A(f"v_pk_add_f32 {r(vACC[hb]+i,2)}, {r(vACC[hb]+i,2)}, {r(vACC[hb]+16+(i&2),2)} neg_lo:[0,1] neg_hi:[0,1]")
    if EARLY:
        A("s_branch L_vgo")
        A("L_last:")
    finalize(0, vDA)
    A("s_mov_b64 exec, -1")
    A(f"v_mov_b32 v{vS}, 0")
    if stamps:
        A("s_mov_b32 s11, 0")
    A("s_barrier")
    for t in (0, 1):
        A(f"ds_read_b128 {r(vX+4*t,4)}, v{vAV} offset:{(4+t)*4096}")
    if AP == 1:
        A("s_mov_b64 exec, s[62:63]")
        A(f"buffer_store_dwordx4 {r(vDA,4)}, v{vOWS}, {srd(SWS)}, s10 offen {xfl}")
        A("s_mov_b64 exec, -1")
    A("s_waitcnt lgkmcnt(0)")
    vcvt([0, 1])
    vpack(0)
    A("s_barrier")
    for t in (2, 3):
        A(f"ds_read_b128 {r(vX+4*t,4)}, v{vAV} offset:{(4+t)*4096}")
    A("s_mov_b64 exec, s[62:63]")
    if AP >= 2:
        A(f"buffer_store_dwordx4 {r(vDA,4)}, v{vOWS}, {srd(SWS)}, s10 offen {xfl}")
    if AP != 3:
        gather(vZ, "s66")
        if BG == 0:
            gather(vY, "s67")
    A("s_mov_b64 exec, -1")
    A("s_waitcnt lgkmcnt(1)")
    vcvt([2])
    A("s_waitcnt lgkmcnt(0)")
    vcvt([3])
    vpack(1)
    vmfma(1)
    A("s_nop 4")
    finalize(1, vD)
    if stamps:
        A("s_memrealtime s[60:61]")
    if AP == 3:
        assert BG == 0
        A("s_waitcnt vmcnt(1)")
        gather(vZ, "s66")
        gather(vY, "s67")
    A("s_not_b64 exec, exec")
    A("s_waitcnt vmcnt(0)" if AP == 3 else "s_waitcnt vmcnt(1)")
    for j in range(4):
        A(f"v_mov_b32 v{vZ+j}, v{vDA+j}")
        A(f"v_mov_b32 v{vY+j}, v{vD+j}")
    A("s_mov_b64 exec, -1")
    if BG and not nostore:
        check(vZ)
        A("s_cbranch_vccz L_a0")
        regather(vZ, "s66")
        if BG == 1:
            A("s_waitcnt vmcnt(1)")
        A("s_mov_b64 exec, s[62:63]")
        gather(vY, "s67")
        A("s_mov_b64 exec, -1")
        A("L_r1:")
        A("s_waitcnt vmcnt(1)")
        check(vZ)
        A("s_cbranch_vccz L_a1")
        regather(vZ, "s66")
        A("s_waitcnt vmcnt(1)")
        check(vY)
        A("s_cbranch_vccz L_bdone")
        regather(vY, "s67")
        A("s_branch L_r1")
        A("L_bdone:")
        reduce_store(2048)
        A("s_mov_b64 exec, -1")
        A("L_cha:")
        A("s_waitcnt vmcnt(0)")
        check(vZ)
        A("s_cbranch_vccz L_suma")
        regather(vZ, "s66")
        A("s_branch L_cha")
        A("L_suma:")
        reduce_store(0)
        A("s_branch L_stamp" if stamps else "s_endpgm")
        A("L_a0:")
        if BG == 1:
            A("s_waitcnt vmcnt(0)")
        A("s_mov_b64 exec, s[62:63]")
        gather(vY, "s67")
        A("s_mov_b64 exec, -1")
        A("L_a1:")
        reduce_store(0)
        A("s_mov_b64 exec, -1")
        A("s_waitcnt vmcnt(1)")
        A("L_r2:")
        check(vY)
        A("s_cbranch_vccz L_sumb")
        regather(vY, "s67")
        A("s_waitcnt vmcnt(0)")
        A("s_branch L_r2")
        A("L_sumb:")
        reduce_store(2048)
    elif ROT and not nostore:
        sets = [vY] + [vX + 4 * i for i in range(ROT - 1)]
        check(vY)
        A("s_cbranch_vccz L_bfirst")
        if ROT > 1:
            A("s_mov_b64 s[96:97], vcc")
        for st in sets[1:]:
            for j in range(4):
                A(f"v_mov_b32 v{st+j}, v{vY+j}")
        A("s_mov_b64 exec, vcc")
        gather(sets[0], "s67")
        A("s_mov_b64 exec, -1")
        check(vZ)
        A("s_cbranch_vccz L_a0")
        regather(vZ, "s66")
        if ROT > 1:
            A("s_mov_b64 exec, s[96:97]")
            for st in sets[1:]:
                A(f"s_sleep {SLP}")
                gather(st, "s67")
            A("s_mov_b64 exec, -1")
        A("L_r1:")
        A(f"s_waitcnt vmcnt({ROT})")
        check(sets[0])
        A("s_cbranch_vccz L_bdone")
        regather(sets[0], "s67")
        A(f"s_waitcnt vmcnt({ROT})")
        check(vZ)
        A("s_cbranch_vccz L_a1")
        regather(vZ, "s66")
        for st in sets[1:]:
            A(f"s_waitcnt vmcnt({ROT})")
            check(st)
            A("s_cbranch_vccz L_bdone")
            regather(st, "s67")
        A("s_branch L_r1")
        A("L_a0:")
        reduce_store(0, vKZ)
        if ROT > 1:
            A("s_mov_b64 exec, s[96:97]")
            for st in sets[1:]:
                A(f"s_sleep {SLP}")
                gather(st, "s67")
            A("s_mov_b64 exec, -1")
        A("L_r2:")
        for i, st in enumerate(sets):
            if i == 1 % ROT:
                A("L_r2b:")
            A(f"s_waitcnt vmcnt({ROT - 1})")
            check(st)
            A("s_cbranch_vccz L_sumb")
            regather(st, "s67")
        A("s_branch L_r2")
        A("L_a1:")
        reduce_store(0, vKZ)
        A("s_branch L_r2b")
        A("L_bdone:")
        A("s_waitcnt vmcnt(0)")
        A("L_bfirst:")
        reduce_store(2048)
        A("s_mov_b64 exec, -1")
        A("L_cha:")
        check(vZ)
        A("s_cbranch_vccz L_suma")
        regather(vZ, "s66")
        A("s_waitcnt vmcnt(0)")
        A("s_branch L_cha")
        A("L_suma:")
        reduce_store(0)
        A("s_branch L_stamp" if stamps else "s_endpgm")
        A("L_sumb:")
        reduce_store(2048)
        A(f"buffer_store_short v{vKZ}, v{vOOUT}, {srd(SOUT)}, s14 offen {outfl}")
    else:
        check(vY)
        if not nostore:
            A("s_cbranch_vccz L_bok")
            regather(vY, "s67")
            A("s_branch L_cha")
        A("L_bok:")
        reduce_store(2048)
        A("s_mov_b64 exec, -1")
        A("s_mov_b32 s67, 0")
        A("L_cha:")
        check(vZ)
        if not nostore:
            A("s_cbranch_vccnz L_rea")
        reduce_store(0)
        A("s_mov_b64 exec, -1")
        A("s_cmp_eq_u32 s67, 0")
        A("s_cbranch_scc1 " + ("L_stamp" if stamps else "L_end"))
        A("s_waitcnt vmcnt(1)")
        if NSET == 1:
            A("L_chb:")
            check(vY)
            A("s_cbranch_vccz L_sumb")
            regather(vY, "s67")
            A("s_waitcnt vmcnt(0)")
            A("s_branch L_chb")
        else:
            sets = [vY] + [vX + 4 * i for i in range(NSET - 1)]
            check(vY)
            A("s_cbranch_vccz L_sumb")
            for st in sets[1:]:
                for j in range(4):
                    A(f"v_mov_b32 v{st+j}, v{vY+j}")
            A("s_mov_b64 exec, vcc")
            for i, st in enumerate(sets):
                if i:
                    A(f"s_sleep {SLP}")
                gather(st, "s67")
            A("s_mov_b64 exec, -1")
            A("L_chb:")
            for st in sets:
                A(f"s_waitcnt vmcnt({NSET - 1})")
                check(st)
                A("s_cbranch_vccz L_sumb")
                regather(st, "s67")
            A("s_branch L_chb")
        A("L_rea:")
        regather(vZ, "s66")
        A("s_waitcnt vmcnt(0)")
        A("s_branch L_cha")
        A("L_sumb:")
        reduce_store(2048)
    if stamps:
        A("L_stamp:")
        if not cst:
            A("s_memrealtime s[58:59]")
            A("s_waitcnt vmcnt(0)")
        A("s_memrealtime s[86:87]")
        A("s_getreg_b32 s88, hwreg(HW_REG_XCC_ID)")
        A("s_lshl_b32 s7, s95, 8")
        A("s_or_b32 s88, s88, s7")
        A("s_waitcnt lgkmcnt(0)")
        A("s_mov_b64 exec, 1")
        A("v_mov_b32 v8, s84")
        A("v_mov_b32 v9, s85")
        A("s_lshl_b32 s94, s94, 16")
        A("s_or_b32 s88, s88, s94")
        A("v_mov_b32 v10, s86")
        A("v_mov_b32 v11, s87")
        A("v_mov_b32 v12, s88")
        A("v_mov_b32 v13, s11")
        A("s_lshl_b32 s89, s2, 2")
        A("s_or_b32 s89, s89, s3")
        A("s_lshl_b32 s89, s89, 5")
        A("s_add_u32 s89, s89, 0x400000")
        A("v_mov_b32 v2, 0")
        A(f"s_mov_b32 s{SWS+2}, 0x800000")
        A(f"buffer_store_dwordx4 v[8:11], v2, {srd(SWS)}, s89 offen")
        A("v_mov_b32 v14, s58")
        A("v_mov_b32 v15, s60")
        A(f"buffer_store_dwordx4 v[12:15], v2, {srd(SWS)}, s89 offen offset:16")
    A("L_end:")
    A("s_endpgm")
    A('.section .rodata,"a"')
    A(".p2align 6")
    A(f".amdhsa_kernel {KNAME}")
    A(f"  .amdhsa_next_free_vgpr {NV}")
    A("  .amdhsa_next_free_sgpr 98")
    A(f"  .amdhsa_accum_offset {NV}")
    A("  .amdhsa_group_segment_fixed_size 0")
    A("  .amdhsa_kernarg_size 112")
    A("  .amdhsa_user_sgpr_count 2")
    A("  .amdhsa_user_sgpr_kernarg_segment_ptr 1")
    A("  .amdhsa_system_sgpr_workgroup_id_x 1")
    A("  .amdhsa_float_denorm_mode_32 3")
    A(".end_amdhsa_kernel")
    return "\n".join(L) + "\n"

if __name__ == "__main__":
    kw = eval("dict(" + (sys.argv[2] if len(sys.argv) > 2 else "") + ")")
    open(sys.argv[1], "w").write(gen(**kw))
```
